```python
import torch

def _softmax(x, axis=-1):
    return torch.softmax(x, dim=axis)
def _gelu(x):
    return torch.nn.functional.gelu(x, approximate="tanh")
def _silu(x):
    return torch.nn.functional.silu(x)
def _sigmoid(x):
    return torch.sigmoid(x)
def _layernorm(x, axis=-1, eps=1e-5):
    m = x.mean(dim=axis, keepdim=True)
    v = x.var(dim=axis, keepdim=True, unbiased=False)
    return (x - m) / torch.sqrt(v + eps)
def _scatter_add(tgt, idx, src, axis=0):
    return tgt.clone().index_add_(axis, idx, src)
def _segment_sum(src, seg, n):
    out = torch.zeros((n,) + src.shape[1:], dtype=src.dtype)
    return out.index_add_(0, seg, src)
def _pad(x, pw):
    flat = tuple(v for pair in reversed(pw) for v in pair)
    return torch.nn.functional.pad(x, flat)

kernel_name = 'concat_heads__mha_block_cached__gqa_block_cached__near_ridge'

def setup_inputs():

    _w = (lambda a: (lambda t: t.to(torch.bfloat16) if t.is_floating_point() else t)(torch.as_tensor(a)))
    def _A_setup():
        B, Sq, D = 16, 160, 512
        H, Sk, Dh = 32, 512, 128
        return {
            "x": _w((lambda *s: torch.randn(*s, dtype=torch.bfloat16) * 0.8)(B, Sq, D)),
            "k_cache": _w((lambda *s: torch.randn(*s, dtype=torch.bfloat16) * 0.8)(B, H, Sk, Dh)),
            "v_cache": _w((lambda *s: torch.randn(*s, dtype=torch.bfloat16) * 0.05)(B, H, Sk, Dh)),
            "wq": _w((lambda *s: torch.randn(*s, dtype=torch.bfloat16) * 0.8)(D, H * Dh) * (D ** -0.5)),
            "wo": _w((lambda *s: torch.randn(*s, dtype=torch.bfloat16) * 0.05)(H * Dh, D) * ((H * Dh) ** -0.5)),
        }
    _A_in = _A_setup()

    def _B_setup():
        B, Sq, D = 16, 160, 512
        Hq, Hkv, Sk, Dh = 32, 32, 512, 128
        assert Hq % Hkv == 0, (Hq, Hkv)
        return {
            "x": _w((lambda *s: torch.randn(*s, dtype=torch.bfloat16) * 0.8)(B, Sq, D)),
            "k_cache": _w((lambda *s: torch.randn(*s, dtype=torch.bfloat16) * 0.8)(B, Hkv, Sk, Dh)),
            "v_cache": _w((lambda *s: torch.randn(*s, dtype=torch.bfloat16) * 0.05)(B, Hkv, Sk, Dh)),
            "wq": _w((lambda *s: torch.randn(*s, dtype=torch.bfloat16) * 0.8)(D, Hq * Dh) * (D ** -0.5)),
            "wo": _w((lambda *s: torch.randn(*s, dtype=torch.bfloat16) * 0.05)(Hq * Dh, D) * ((Hq * Dh) ** -0.5)),
        }
    _B_in = _B_setup()

    return {
        "A_x": _A_in["x"],
        "A_k_cache": _A_in["k_cache"],
        "A_v_cache": _A_in["v_cache"],
        "A_wq": _A_in["wq"],
        "A_wo": _A_in["wo"],
        "B_x": _B_in["x"],
        "B_k_cache": _B_in["k_cache"],
        "B_v_cache": _B_in["v_cache"],
        "B_wq": _B_in["wq"],
        "B_wo": _B_in["wo"],
    }

def reference(A_x, A_k_cache, A_v_cache, A_wq, A_wo, B_x, B_k_cache, B_v_cache, B_wq, B_wo):
    def _A_ref(x, k_cache, v_cache, wq, wo):
        B, Sq, D = x.shape
        H, Dh = 32, 128
        q = (lambda x, *d: x.permute(*d))((x @ wq).reshape(B, Sq, H, Dh), 0, 2, 1, 3)
        scores = torch.einsum("bhqd,bhkd->bhqk", q, k_cache) * (Dh ** -0.5)
        p = _softmax(scores, axis=-1)
        o = torch.einsum("bhqk,bhkd->bhqd", p, v_cache)
        return (lambda x, *d: x.permute(*d))(o, 0, 2, 1, 3).reshape(B, Sq, H * Dh) @ wo

    def _B_ref(x, k_cache, v_cache, wq, wo):
        B, Sq, D = x.shape
        Hq, Dh = 32, 128
        Hkv = k_cache.shape[1]
        rep = Hq // Hkv
        q = (lambda x, *d: x.permute(*d))((x @ wq).reshape(B, Sq, Hq, Dh), 0, 2, 1, 3)
        k = (lambda x, n, axis: torch.repeat_interleave(x, n, dim=axis))(k_cache, rep, axis=1)
        v = (lambda x, n, axis: torch.repeat_interleave(x, n, dim=axis))(v_cache, rep, axis=1)
        scores = torch.einsum("bhqd,bhkd->bhqk", q, k) * (Dh ** -0.5)
        p = _softmax(scores, axis=-1)
        o = torch.einsum("bhqk,bhkd->bhqd", p, v)
        return (lambda x, *d: x.permute(*d))(o, 0, 2, 1, 3).reshape(B, Sq, Hq * Dh) @ wo

    a = _A_ref(A_x, A_k_cache, A_v_cache, A_wq, A_wo)
    b = _B_ref(B_x, B_k_cache, B_v_cache, B_wq, B_wo)
    return torch.concatenate([a, b], axis=-1)
```

```python
import re

def R(f, a, n=1):
    return [f"{f}{a+i}" for i in range(n)]

def rt(f, a, n=1):
    return f"{f}{a}" if n == 1 else f"{f}[{a}:{a+n-1}]"

class Op:
    __slots__ = ("text", "kind", "rd", "wr", "meta")
    def __init__(self, text, kind, rd=(), wr=(), **meta):
        self.text = text; self.kind = kind
        self.rd = list(rd); self.wr = list(wr); self.meta = meta
    def __repr__(self): return f"<{self.kind}:{self.text}>"

_tok = re.compile(r"\b([vas])\[(\d+):(\d+)\]|\b([vas])(\d+)\b|\b(m0|vcc|exec|vcc_lo|vcc_hi|exec_lo|exec_hi)\b")
def regs_of(s):
    out = []
    for m in _tok.finditer(s):
        if m.group(1): out += R(m.group(1), int(m.group(2)), int(m.group(3)) - int(m.group(2)) + 1)
        elif m.group(4): out.append(m.group(4) + m.group(5))
        else: out.append(m.group(6).split("_")[0])
    return out

def split_ops(text):
    mn, _, rest = text.partition(" ")
    return mn, [x.strip() for x in rest.split(",")]

TRANS = ("v_exp_f32", "v_rcp_f32", "v_log_f32", "v_rsq_f32", "v_sqrt_f32")
def I(text, **meta):
    mn, ops = split_ops(text)
    if mn.startswith("v_mfma"):
        d, a, b, c = ops[:4]
        return Op(text, "M", regs_of(a) + regs_of(b) + regs_of(c), regs_of(d),
                  A=regs_of(a), B=regs_of(b), C=regs_of(c), D=regs_of(d), **meta)
    if mn.startswith("v_cmp"):
        return Op(text, "c", regs_of(",".join(ops[1:])), regs_of(ops[0]), **meta)
    if mn.startswith("v_permlane"):
        r = regs_of(",".join(ops)); return Op(text, "c", r, r, perm=True, **meta)
    if mn.startswith("v_readfirstlane") or mn.startswith("v_readlane"):
        return Op(text, "c", regs_of(",".join(ops[1:])), regs_of(ops[0]), rdlane=True, **meta)
    if mn.startswith("v_"):
        k = "e" if mn.replace("_e32", "").replace("_e64", "") in TRANS else "c"
        rd = regs_of(",".join(ops[1:]))
        if mn.startswith("v_fmac") or mn.startswith("v_mac"): rd += regs_of(ops[0])
        if mn.startswith("v_pk_"): meta["pk"] = True
        return Op(text, k, rd, regs_of(ops[0]), **meta)
    if mn.startswith("ds_read"):
        return Op(text, "r", regs_of(ops[1].split()[0]), regs_of(ops[0]), **meta)
    if mn.startswith("ds_write"):
        return Op(text, "W", regs_of(ops[0]) + regs_of(ops[1].split()[0]), [], **meta)
    if mn.startswith("buffer_load") and text.rstrip().endswith(" lds"):
        return Op(text, "d", regs_of(",".join(ops)) + ["m0"], [], dma=True, **meta)
    if mn.startswith("buffer_load") or mn.startswith("global_load"):
        return Op(text, "d", regs_of(",".join(ops[1:])), regs_of(ops[0]), **meta)
    if mn.startswith("buffer_atomic") or mn.startswith("global_atomic"):
        ret = " sc0" in text
        return Op(text, "d", regs_of(",".join(ops)), regs_of(ops[0]) if ret else [], **meta)
    if mn.startswith("buffer_store"):
        return Op(text, "S", regs_of(",".join(ops)), [], data=regs_of(ops[0]), **meta)
    if mn.startswith("global_store"):
        return Op(text, "S", regs_of(",".join(ops)), [], data=regs_of(ops[1]), **meta)
    if mn == "s_nop":
        return Op(text, "n", n=int(ops[0]) + 1, **meta)
    if mn == "s_barrier": return Op(text, "B", **meta)
    if mn.startswith("s_cbranch") or mn == "s_branch" or mn == "s_endpgm" or mn == "s_setprio" or mn == "s_sleep":
        return Op(text, "s", **meta)
    if mn.startswith("s_cmp"):
        return Op(text, "s", regs_of(",".join(ops)), ["scc"], **meta)
    if mn.startswith("s_load") or mn.startswith("s_mem"):
        return Op(text, "L", regs_of(",".join(ops[1:])), regs_of(ops[0]), **meta)
    if mn == "s_waitcnt":
        o = Op(text, "w", **meta)
        m = re.search(r"vmcnt\((\d+)\)", text); o.meta["vm"] = int(m.group(1)) if m else None
        m = re.search(r"lgkmcnt\((\d+)\)", text); o.meta["lg"] = int(m.group(1)) if m else None
        o.meta["fixed"] = True
        return o
    if mn.startswith("s_"):
        return Op(text, "s", regs_of(",".join(ops[1:])), regs_of(ops[0]), **meta)
    raise ValueError(text)

def Label(name): return Op(name + ":", "l")
def Raw(text): return Op(text, "l")

def Wait(vm_tags=(), lg_ops=None, lg0=False, vm0=False):
    return Op("s_waitcnt ?", "w", vm_tags=list(vm_tags), lg_ops=lg_ops, lg0=lg0, vm0=vm0, vm=None, lg=None)

VM_KINDS = ("d", "S"); LG_KINDS = ("r", "W")

class Prog:
    def __init__(self):
        self.blocks = {}
        self.trace = []
        self.layout = []
    def emit(self, name, ops):
        ops = [o for o in ops if o is not None]
        self.trace.append((name, ops))
        if name not in self.blocks: self.blocks[name] = ops
        else:
            ref = self.blocks[name]
            assert len(ref) == len(ops), (name, len(ref), len(ops))
            for x, y in zip(ref, ops):
                assert x.text == y.text, (name, x.text, y.text)
    def resolve_waits(self):
        site = {}
        vmq = []; lgq = []
        for name, ops in self.trace:
            for i, o in enumerate(ops):
                if o.kind in VM_KINDS: vmq.append(o)
                elif o.kind in LG_KINDS: lgq.append(o)
                elif o.kind == "w" and not o.meta.get("fixed"):
                    vm = lg = None
                    if o.meta["vm0"]: vm = 0
                    elif o.meta["vm_tags"]:
                        last = -1
                        for t in o.meta["vm_tags"]:
                            idx = [k for k, q in enumerate(vmq) if q.meta.get("tag") == t]
                            assert idx, ("wait for never-issued tag", t, name)
                            last = max(last, idx[-1])
                        vm = min(63, len(vmq) - 1 - last)
                    if o.meta["lg0"]: lg = 0
                    elif o.meta["lg_ops"]:
                        last = max(k for k, q in enumerate(lgq) if any(q is z for z in o.meta["lg_ops"]))
                        lg = min(15, len(lgq) - 1 - last)
                    s = site.setdefault((name, i), [None, None])
                    if vm is not None: s[0] = vm if s[0] is None else min(s[0], vm)
                    if lg is not None: s[1] = lg if s[1] is None else min(s[1], lg)
        for name, ops in self.trace:
            for i, o in enumerate(ops):
                if (name, i) in site:
                    vm, lg = site[(name, i)]
                    o.meta["vm"], o.meta["lg"] = vm, lg
                    t = "s_waitcnt"
                    if vm is not None: t += f" vmcnt({vm})"
                    if lg is not None: t += f" lgkmcnt({lg})"
                    assert t != "s_waitcnt", (name, i)
                    o.text = t
    def verify(self):
        errs = []
        flat = [(n, o) for n, ops in self.trace for o in ops if o.kind != "l"]
        pos = 0
        lastw = {}
        lastC = {}
        store_data = {}
        vm_out = []; lg_out = []; sm_out = []
        tile_state = {}
        slot_reads = {}
        def err(m): errs.append(f"[{n}] {o.text}: {m}")
        for n, o in flat:
            k = o.kind
            isvalu = k in ("c", "e")
            pend = set()
            for q in vm_out + lg_out + sm_out: pend.update(q.wr)
            for r in o.rd + ([] if o.meta.get("waw_ok") else o.wr):
                if r in pend: err(f"{r} has an outstanding load")
            for r in o.rd:
                if r not in lastw: continue
                p, w = lastw[r]; d = pos - p - 1
                if w.kind == "M":
                    if k == "M":
                        if r in o.meta["A"] or r in o.meta["B"]: need = 8
                        elif o.meta["C"] == w.meta["D"]: need = 0
                        else: need = 6
                    else: need = 8
                    if d < need: err(f"mfma->{r} dist {d}<{need}")
                elif w.kind in ("c", "e"):
                    need = 0
                    if k == "M": need = 2
                    elif o.meta.get("perm"): need = 2
                    elif o.meta.get("rdlane") and r[0] == "v": need = 1
                    elif isvalu and (r[0] == "s" or r == "vcc"): need = 2
                    elif k in ("d", "S") and r[0] == "s": need = 5
                    if w.kind == "e" and isvalu and k != "e": need = max(need, 1)
                    if d < need: err(f"valu->{r} dist {d}<{need}")
                elif w.kind == "s" and r == "m0" and o.meta.get("dma"):
                    if d < 1: err("m0 dist")
            for r in o.wr:
                if r in lastw:
                    p, w = lastw[r]; d = pos - p - 1
                    if w.kind == "M" and k != "M" and d < 8: err(f"mfma->WAW {r} dist {d}")
                    if w.kind == "M" and k == "M" and o.meta["D"] != w.meta["D"] and d < 6: err(f"mfma WAW overlap {r}")
                if isvalu and r in lastC and pos - lastC[r] - 1 < 3: err(f"C WAR {r}")
                if r in store_data and pos - store_data[r] - 1 < 2: err(f"store data WAR {r}")
            tg = o.meta.get("rtile")
            if tg is not None:
                for t in (tg if isinstance(tg, list) else [tg]):
                    if tile_state.get(t) != "pub": err(f"read of tile {t} state {tile_state.get(t)}")
                for sl in o.meta.get("rslot", []): slot_reads.setdefault(sl, []).append([o, "issued"])
            if o.meta.get("wslot") is not None:
                for sl in o.meta["wslot"]:
                    for rec in slot_reads.get(sl, []):
                        if rec[1] != "released": err(f"overwrite of slot {sl} while read {rec[0].text} is {rec[1]}")
                    slot_reads[sl] = []
                    for t2, st in tile_state.items():
                        if st == "flight" and t2 != o.meta.get("tag") and sl in self.tile_slots.get(t2, []):
                            err(f"overwrite of slot {sl} while tile {t2} in flight")
                self.tile_slots.setdefault(o.meta.get("tag"), []).extend(o.meta["wslot"])
                tile_state[o.meta.get("tag")] = "flight"
            if k in VM_KINDS: vm_out.append(o)
            elif k in LG_KINDS: lg_out.append(o)
            elif k == "L": sm_out.append(o)
            elif k == "w":
                if o.meta["vm"] is not None:
                    while len(vm_out) > o.meta["vm"]: vm_out.pop(0)
                if o.meta["lg"] is not None:
                    if sm_out and o.meta["lg"] != 0: err("counted lgkm with smem outstanding")
                    while len(lg_out) > o.meta["lg"]: lg_out.pop(0)
                    if o.meta["lg"] == 0: sm_out = []
                live = {q.meta.get("tag") for q in vm_out + lg_out}
                for t, st in tile_state.items():
                    if st == "flight" and t not in live: tile_state[t] = "landed"
                for recs in slot_reads.values():
                    for rec in recs:
                        if rec[1] == "issued" and not any(rec[0] is q for q in lg_out): rec[1] = "done"
            elif k == "B":
                for t, st in tile_state.items():
                    if st == "landed": tile_state[t] = "pub"
                for recs in slot_reads.values():
                    for rec in recs:
                        if rec[1] == "done": rec[1] = "released"
            if len(vm_out) > 63: err("vmcnt overflow")
            for r in o.wr: lastw[r] = (pos, o)
            if k == "M":
                for r in o.meta["C"]: lastC[r] = pos
            if k == "S":
                for r in o.meta["data"]: store_data[r] = pos
            pos += o.meta.get("n", 1)
        return errs
    tile_slots = None
    def text(self):
        out = []
        used = set()
        for b in self.layout:
            if b in self.blocks:
                used.add(b)
                out.append(f"; ---- {b}")
                for o in self.blocks[b]:
                    out.append(o.text if o.kind == "l" else "  " + o.text)
            else: out.append(b)
        missing = set(self.blocks) - used
        assert not missing, missing
        return "\n".join(out) + "\n"

def step_cost(t, prev, o):
    k = o.kind
    if k in ("c", "e"):
        return max(t, 8) + (8 if k == "e" else 4)
    if k == "r": return t + (4 if prev in ("c", "e") else 0) + 8
    if k == "W": return t + (4 if prev in ("c", "e") else 0) + 16
    if k in ("d", "S"): return t + (4 if prev in ("c", "e") else 0) + 12
    if k == "n": return t + 4 * o.meta["n"]
    if k == "l": return t
    return t + 4

def estimate(ops):
    total = 0; t = None; prev = None
    for o in ops:
        if o.kind == "M":
            if t is not None: total += max(16, t) if inm else t
            t = 4; inm = True; prev = "M"
        else:
            if t is None: t = 8; inm = False; total -= 8
            t = step_cost(t, prev, o); prev = o.kind
    if t is not None: total += max(16, t) if inm else t
    return total

def weave(mfmas, fixed, queue=(), start_dist=None):
    out = []; queue = list(queue)
    wpos = {}
    def npos(): return sum(o.meta.get("n", 1) for o in out if o.kind != "l")
    def need(o):
        nd = 0; p = npos()
        for r in o.rd + o.wr:
            if r in wpos:
                q, w = wpos[r]; d = p - q - 1; x = 0
                if w.kind == "M" and o.kind != "M": x = 8
                elif w.kind == "M" and o.kind == "M" and r in o.rd and (r in o.meta["A"] or r in o.meta["B"]): x = 8
                elif w.kind in ("c", "e") and r in o.rd:
                    if o.kind == "M" or o.meta.get("perm"): x = 2
                    elif w.kind == "e" and o.kind == "c": x = 1
                    elif r[0] == "s" or r == "vcc": x = 2
                nd = max(nd, x - d)
        return nd
    def put(o):
        nd = need(o)
        if nd > 0:
            out.append(I(f"s_nop {nd-1}"))
        p = npos(); out.append(o)
        for r in o.wr: wpos[r] = (p, o)
    future_w = {}
    for o in fixed.get(-1, []): put(o)
    for g, m in enumerate(mfmas):
        rs = set(m.rd)
        idx = [i for i, q in enumerate(queue) if rs.intersection(q.wr) and not q.meta.get("after", -1) >= g]
        if idx:
            for q in queue[:idx[-1] + 1]: put(q)
            queue = queue[idx[-1] + 1:]
        put(m)
        t = 4; prev = "M"
        for o in fixed.get(g, []):
            put(o); t = step_cost(t, prev, o); prev = o.kind
        while queue:
            q = queue[0]
            if q.meta.get("after", -1) > g: break
            if need(q) > 0: break
            t2 = step_cost(t, prev, q)
            if t2 > 16: break
            put(q); queue.pop(0); t = t2; prev = q.kind
    for q in queue: put(q)
    return out
```

```python
import sys, os, math, struct
sys.path.insert(0, os.path.dirname(os.path.abspath(__file__)))
from fw import *

KN = "concat_heads__mha_block_cached__gqa_block_cached__near_ridge_kernel"
RN = "reduce_partials_kernel"
OPT = dict(stamps=0, dump="", kvpol="nt", wpol="", ppol="", touch=1)
for a in sys.argv[1:]:
    k, v = a.split("=")
    OPT[k] = int(v) if v.lstrip("-").isdigit() else v
def pol(x): return (" " + x.replace("+", " ")) if x else ""

VB = 0; KB = 65536; XO = 114688; XE = 135168
SLOT = 16384
vL = 0
vKr = 1; vVr = 5; vKd = 13; vDd = 17; vV0 = 21; vW0 = 22; vO0 = 23
vT = 24
vNM = 36
vXd = 36; vWr = 41; vXr = 45
vS = 56
vACC = 96
vOr = 24; vP = 28
vOACC = 176
aQ = 0; aOP = 80; aKF = 160; aVF = 192; aL = 224; aONE = 244; aW7 = 248; aW6 = 252; aXF = 192
sX = 4; sK = 8; sD = 12; sP = 16
sVb = 20; sWb = 22; sOb = 24
sWn = 26
sWave = 27; sW4k = 28; sW5k = 29
sOffK = 30; sOffD = 31; sIncD = 32; sOffX = 33; sM0K = 34; sCnt = 35; sPair = 36
sChunk = 37; sOffP = 38; sCS = 40
sTmp = 42
sChunkP = 50
sST = 60
CSCALE = struct.unpack("<I", struct.pack("<f", math.log2(math.e) / math.sqrt(128.0)))[0]

P = Prog(); P.tile_slots = {}
nstamp = [0]
def stamp():
    if not OPT["stamps"]: return []
    i = nstamp[0]; nstamp[0] += 1
    return [I("s_waitcnt lgkmcnt(0)"), I(f"s_memrealtime s[{sST+2*i}:{sST+2*i+1}]"), I("s_waitcnt lgkmcnt(0)")]

def mf(d, a, b, c):
    return I(f"v_mfma_f32_16x16x32_bf16 {d}, {a}, {b}, {c}")
def dma(v, srd, soff, imm, tag, slots, p):
    o = f" offset:{imm}" if imm else ""
    return I(f"buffer_load_dwordx4 v{v}, s[{srd}:{srd+3}], s{soff} offen{o}{pol(p)} lds", tag=tag, wslot=slots)
def m0set(base, c): return I(f"s_add_u32 m0, s{base}, {c}")
def dgroup(tag, slot, p):
    return [dma(vDd + j, sD, sOffD, 1024 * j, tag, [f"V{slot}"], p) for j in range(4)]
def kgroup(tag, slot):
    sl = [f"K{slot}"] + (["XO"] if slot == 3 else [])
    return [dma(vKd + j, sK, sOffK, 1024 * j, tag, sl, OPT["kvpol"]) for j in range(4)]
def xslots(par): return ["XO", "K3"] if par else ["XE"]
def xgroup(j):
    par = j & 1; base = XO if par else XE
    ops = [m0set(sW5k, base)]
    ops += [dma(vXd + i, sX, sOffX, 1024 * i, f"x{j}", xslots(par), OPT["wpol"]) for i in range(4)]
    ops += [m0set(sW5k, base + 4096), dma(vXd + 4, sX, sOffX, 0, f"x{j}", xslots(par), OPT["wpol"])]
    return ops

def acc(u, t): return vACC + ((u >> 1) * 5 + t) * 8 + (u & 1) * 4
def wf(u, par): return (aW7 if u == 7 else aW6) if (u >= 6 and par) else aKF + 4 * u

def setD_V():
    return [I(f"s_mov_b32 s{sD}, s{sVb}"), I(f"s_mov_b32 s{sD+1}, s{sVb+1}"), I(f"s_mov_b32 s{sD+2}, 0x20000"),
            I(f"s_mov_b32 s{sOffD}, 0"), I(f"s_mov_b32 s{sIncD}, 8192"),
            I(f"v_mov_b32 v{vDd}, v{vV0}"), I(f"v_xor_b32 v{vDd+1}, 0x80, v{vV0}"),
            I(f"v_mov_b32 v{vDd+2}, v{vV0}"), I(f"v_xor_b32 v{vDd+3}, 0x80, v{vV0}")]
def setD_W(coloff):
    return [I(f"s_mov_b32 s{sD}, s{sWb}"), I(f"s_mov_b32 s{sD+1}, s{sWb+1}"), I(f"s_mov_b32 s{sD+2}, s{sWn}"),
            I(f"s_mov_b32 s{sOffD}, {coloff}"), I(f"s_mov_b32 s{sIncD}, 0x40000"),
            I(f"v_mov_b32 v{vDd}, v{vW0}")] + [I(f"v_add_u32 v{vDd+j}, {31744*j}, v{vW0}") for j in (1, 2, 3)]
def setD_O():
    return [I(f"s_mov_b32 s{sD}, s{sOb}"), I(f"s_mov_b32 s{sD+1}, s{sOb+1}"), I(f"s_mov_b32 s{sD+2}, 0x80000"),
            I(f"s_mov_b32 s{sOffD}, s{sChunk}"), I(f"s_mov_b32 s{sIncD}, 0x20000"),
            I(f"v_mov_b32 v{vDd}, v{vO0}")] + [I(f"v_add_u32 v{vDd+j}, {7168*j}, v{vO0}") for j in (1, 2, 3)]
incD = lambda: I(f"s_add_u32 s{sOffD}, s{sOffD}, s{sIncD}")

def prologue():
    o = []
    A = lambda s: o.extend(I(x.strip()) for x in s.strip().split("\n") if x.strip())
    A(f"""
    s_cmp_ge_u32 s2, 256
    s_cbranch_scc1 L_end
    s_and_b32 s42, s2, 7
    s_lshr_b32 s43, s2, 3
    s_lshr_b32 s44, s42, 2
    s_mul_i32 s45, s44, 40
    s_add_u32 s46, s0, s45
    s_addc_u32 s47, s1, 0
    s_load_dwordx4 s[52:55], s[46:47], 0
    s_load_dwordx4 s[56:59], s[46:47], 16
    s_load_dwordx2 s[{sOb}:{sOb+1}], s[46:47], 32
    s_load_dwordx2 s[{sP}:{sP+1}], s[0:1], 96
    v_lshrrev_b32 v{vT}, 6, v0
    v_and_b32 v{vL}, 63, v0
    v_readfirstlane_b32 s{sWave}, v{vT}
    s_and_b32 s45, s42, 3
    s_lshl_b32 s45, s45, 1
    s_and_b32 s46, s43, 1
    s_add_u32 s45, s45, s46
    s_lshr_b32 s43, s43, 1
    """)
    o += stamp()
    A(f"""
    s_lshl_b32 s{sW4k}, s{sWave}, 12
    s_mul_i32 s{sW5k}, s{sWave}, 5120
    s_lshr_b32 s46, s{sWave}, 1
    s_and_b32 s47, s{sWave}, 1
    s_waitcnt lgkmcnt(0)
    s_mul_i32 s48, s43, 163840
    s_add_u32 s{sX}, s52, s48
    s_addc_u32 s{sX+1}, s53, 0
    s_mov_b32 s{sX+2}, 163840
    s_mov_b32 s{sX+3}, 0x20000
    s_lshl_b32 s48, s45, 10
    s_lshl_b32 s49, s46, 8
    s_add_u32 s48, s48, s49
    s_add_u32 s{sWb}, s58, s48
    s_addc_u32 s{sWb+1}, s59, 0
    s_sub_u32 s{sWn}, 0x400000, s48
    s_mov_b32 s{sD+3}, 0x20000
    s_lshl_b32 s48, s43, 5
    s_lshl_b32 s49, s45, 2
    s_add_u32 s48, s48, s49
    s_add_u32 s48, s48, s46
    s_lshl_b32 s48, s48, 17
    s_add_u32 s{sK}, s54, s48
    s_addc_u32 s{sK+1}, s55, 0
    s_mov_b32 s{sK+2}, 0x20000
    s_mov_b32 s{sK+3}, 0x20000
    s_add_u32 s{sVb}, s56, s48
    s_addc_u32 s{sVb+1}, s57, 0
    s_lshl_b32 s48, s45, 19
    s_add_u32 s{sOb}, s{sOb}, s48
    s_addc_u32 s{sOb+1}, s{sOb+1}, 0
    s_lshl_b32 s48, s44, 4
    s_add_u32 s48, s48, s43
    s_lshl_b32 s48, s48, 3
    s_add_u32 s48, s48, s45
    s_mul_i32 s48, s48, 163840
    s_add_u32 s{sP}, s{sP}, s48
    s_addc_u32 s{sP+1}, s{sP+1}, 0
    s_mov_b32 s{sP+2}, 163840
    s_mov_b32 s{sP+3}, 0x20000
    s_add_u32 s48, s45, 1
    s_and_b32 s48, s48, 7
    s_lshl_b32 s{sChunk}, s48, 7
    s_mul_i32 s{sChunkP}, s48, 20480
    s_mov_b32 s{sCS}, {CSCALE}
    s_mov_b32 s{sCS+1}, {CSCALE}
    s_mov_b32 s{sPair}, 0
    """)
    g, i15, r, c, x, y = (vT + k for k in range(6))
    A(f"""
    v_lshrrev_b32 v{g}, 4, v{vL}
    v_and_b32 v{i15}, 15, v{vL}
    v_bfe_u32 v{r}, v{vL}, 2, 2
    v_and_b32 v{c}, 3, v{vL}
    s_lshl_b32 s48, s47, 17
    v_lshlrev_b32 v{x}, 2, v{g}
    v_xor_b32 v{x}, v{x}, v{i15}
    v_lshlrev_b32 v{x}, 4, v{x}
    v_lshl_add_u32 v{x}, v{g}, 13, v{x}
    v_add_u32 v{vW0}, s48, v{x}
    """)
    o += setD_W(0)
    for ks in range(3):
        o += [m0set(sW4k, VB + ks * SLOT), I("s_nop 0")] + dgroup(f"W0_{ks}", ks, OPT["wpol"]) + [incD()]
    A(f"""
    s_lshl_b32 s48, s47, 12
    v_lshl_add_u32 v{y}, v{g}, 8, s48
    v_xor_b32 v{x}, v{g}, v{i15}
    """)
    for j in range(4):
        A(f"v_xor_b32 v{vKd+j}, {4*j}, v{x}\nv_lshl_add_u32 v{vKd+j}, v{vKd+j}, 4, v{y}")
    A(f"""
    v_lshlrev_b32 v{x}, 1, v{g}
    v_xor_b32 v{x}, v{x}, v{i15}
    v_lshl_add_u32 v{vV0}, v{x}, 4, v{y}
    s_lshl_b32 s48, s{sWave}, 15
    v_lshrrev_b32 v{y}, 3, v{vL}
    v_lshl_add_u32 v{y}, v{y}, 10, s48
    v_lshlrev_b32 v{x}, 1, v{g}
    v_and_b32 v{vO0}, 7, v{vL}
    v_xor_b32 v{x}, v{x}, v{vO0}
    v_lshl_add_u32 v{vO0}, v{x}, 4, v{y}
    s_lshl_b32 s48, s46, 13
    s_add_u32 s49, s48, {KB}
    v_lshl_add_u32 v{y}, v{i15}, 8, s49
    v_xor_b32 v{x}, v{g}, v{i15}
    """)
    for s in range(4):
        A(f"v_xor_b32 v{vKr+s}, {4*s}, v{x}\nv_lshl_add_u32 v{vKr+s}, v{vKr+s}, 4, v{y}")
    A(f"""
    v_lshl_add_u32 v{y}, v{g}, 2, v{r}
    v_and_b32 v{x}, 7, v{y}
    v_lshl_add_u32 v{y}, v{y}, 8, s48
    v_lshl_add_u32 v{y}, v{c}, 3, v{y}
    """)
    for u in range(8):
        A(f"v_xor_b32 v{vVr+u}, {u}, v{x}\nv_lshl_add_u32 v{vVr+u}, v{vVr+u}, 5, v{y}")
    A(f"v_mov_b32 v{x}, 0x3f803f80")
    for k in range(4): A(f"v_accvgpr_write_b32 a{aONE+k}, v{x}")
    P.emit("PRO", o)

def touches():
    o = []
    A = lambda s: o.extend(I(x.strip()) for x in s.strip().split("\n") if x.strip())
    if OPT["touch"]:
        x, y = vT + 4, vT + 5
        for k in range(4):
            A(f"""
            v_add_u32 v{x}, {64*k}, v{vL}
            v_mul_u32_u24 v{y}, 43691, v{x}
            v_lshrrev_b32 v{y}, 18, v{y}
            v_mul_u32_u24 v{vT+6}, 6, v{y}
            v_sub_u32 v{x}, v{x}, v{vT+6}
            v_lshlrev_b32 v{x}, 7, v{x}
            v_lshl_add_u32 v{x}, v{y}, 10, v{x}
            s_mul_i32 s48, s{sWave}, 40960
            s_add_u32 s48, s48, 256
            """)
            if k == 3:
                A(f"v_cmp_gt_u32 vcc, 48, v{vL}\nv_mov_b32 v{vT+7}, 0x100000\ns_nop 0\nv_cndmask_b32 v{x}, v{vT+7}, v{x}, vcc")
            o.append(I(f"buffer_load_dword v{vT+8+k}, v{x}, s[{sX}:{sX+3}], s48 offen{pol(OPT['wpol'])}", tag="touch"))
        A(f"""
        s_lshr_b32 s48, s2, 4
        s_mul_i32 s48, s48, 26
        s_and_b32 s49, s{sWave}, 1
        s_mul_i32 s49, s49, 13
        s_add_u32 s48, s48, s49
        s_add_u32 s48, s48, 96
        s_lshl_b32 s48, s48, 13
        v_lshrrev_b32 v{y}, 1, v{vL}
        v_and_b32 v{x}, 1, v{vL}
        v_lshlrev_b32 v{x}, 7, v{x}
        v_lshl_add_u32 v{x}, v{y}, 13, v{x}
        v_cmp_gt_u32 vcc, 26, v{vL}
        v_mov_b32 v{vT+7}, 0x1000000
        s_nop 0
        v_cndmask_b32 v{x}, v{vT+7}, v{x}, vcc
        """)
        o.append(I(f"buffer_load_dword v{vT+7}, v{x}, s[{sD}:{sD+3}], s48 offen{pol(OPT['wpol'])}", tag="touch"))
    P.emit("TOUCH", o)

def qpre(p):
    o = []
    A = lambda s: o.extend(I(x.strip()) for x in s.strip().split("\n") if x.strip())
    g, i15, r, c, x, y = (vT + k for k in range(6))
    A(f"""
    v_lshrrev_b32 v{g}, 4, v{vL}
    v_and_b32 v{x}, 7, v{vL}
    v_xor_b32 v{x}, v{x}, v{g}
    s_and_b32 s48, s{sWave}, 1
    s_lshl_b32 s48, s48, 2
    v_xor_b32 v{x}, s48, v{x}
    v_lshrrev_b32 v{y}, 3, v{vL}
    s_mul_i32 s49, s{sWave}, 40960
    v_lshl_add_u32 v{y}, v{y}, 10, s49
    v_lshl_add_u32 v{vXd}, v{x}, 4, v{y}
    v_xor_b32 v{x}, 64, v{vXd}
    v_add_u32 v{vXd+1}, 7168, v{x}
    v_add_u32 v{vXd+2}, 14336, v{vXd}
    v_add_u32 v{vXd+3}, 21504, v{x}
    v_add_u32 v{vXd+4}, 32768, v{vXd}
    s_mov_b32 s{sOffX}, 0
    """)
    xg = xgroup(0); xg.insert(1, I("s_nop 0")); xg.insert(-1, I("s_nop 0"))
    for q in xg:
        if q.meta.get("tag"): q.meta["tag"] = f"x{p}_0"
    o += xg + [I(f"s_add_u32 s{sOffX}, s{sOffX}, 128")]
    xg = xgroup(1); xg.insert(1, I("s_nop 0")); xg.insert(-1, I("s_nop 0"))
    for q in xg:
        if q.meta.get("tag"): q.meta["tag"] = f"x{p}_1"
    o += xg + [I(f"s_add_u32 s{sOffX}, s{sOffX}, 128")]
    A(f"""
    v_and_b32 v{i15}, 15, v{vL}
    v_bfe_u32 v{r}, v{vL}, 2, 2
    v_and_b32 v{c}, 3, v{vL}
    s_lshr_b32 s48, s{sWave}, 1
    s_lshl_b32 s48, s48, 13
    v_lshl_add_u32 v{y}, v{g}, 3, v{r}
    v_lshl_add_u32 v{y}, v{y}, 8, s48
    v_lshl_add_u32 v{y}, v{c}, 4, v{y}
    """)
    for s in range(4):
        A(f"v_xor_b32 v{vWr+s}, {s}, v{r}\nv_lshl_add_u32 v{vWr+s}, v{vWr+s}, 6, v{y}")
    A(f"""
    s_and_b32 s48, s{sWave}, 1
    s_mul_i32 s48, s48, 10240
    s_add_u32 s48, s48, {XO}
    v_lshl_add_u32 v{y}, v{i15}, 7, s48
    v_lshrrev_b32 v{x}, 1, v{i15}
    v_xor_b32 v{x}, v{x}, v{g}
    v_lshl_add_u32 v{vXr}, v{x}, 4, v{y}
    v_xor_b32 v{vXr+1}, 64, v{vXr}
    s_mov_b32 s{sOffK}, 0
    s_add_u32 s{sM0K}, s{sW4k}, {KB}
    s_mov_b32 s{sCnt}, 0
    """)
    P.emit("QPRE", o)

def wreads(p, ks, u):
    par = ks & 1; s, e = u >> 1, u & 1; slot = ks & 3; d = wf(u, par)
    return [I(f"ds_read_b64_tr_b16 a[{d+2*h}:{d+2*h+1}], v{vWr+s} offset:{slot*SLOT + h*1024 + 8*e}",
              rtile=f"W{p}_{ks}", rslot=[f"V{slot}"]) for h in range(2)]
def xreads(p, ks):
    j = ks >> 1; kk = ks & 1; boff = 0 if (j & 1) else XE - XO
    return [I(f"ds_read_b128 a[{aXF+20*kk+4*t}:{aXF+20*kk+4*t+3}], v{vXr+kk} offset:{boff + t*2048}",
              rtile=f"x{p}_{j}", rslot=xslots(j & 1)) for t in range(5)]
def kreads(p, i):
    slot = i & 3
    return [I(f"ds_read_b128 a[{aKF+4*f}:{aKF+4*f+3}], v{vKr+(f&3)} offset:{slot*SLOT + (f>>2)*4096}",
              rtile=(f"K{p}_{i}" if i < 16 else None), rslot=[f"K{slot}"]) for f in range(8)]

qstate = {}
def qfirst(p):
    o = [Wait(vm_tags=[f"x{p}_0", f"W{p}_0"]), I("s_barrier")]
    rd = xreads(p, 0)
    for u in range(8): rd += wreads(p, 0, u)
    qstate["first"] = rd
    o += rd
    P.emit("QFIRST", o)

def qstep(p, ks, name, extra_end=()):
    par = ks & 1
    ms = []
    for u in range(8):
        for t in range(5):
            a = acc(u, t); d = rt("v", a, 4)
            ms.append(mf(d, rt("a", wf(u, par), 4), rt("a", aXF + 20 * par + 4 * t, 4), "0" if ks == 0 else d))
    fx = {}
    def at(g, *ops): fx.setdefault(g, []).extend(ops)
    tags = []
    if ks < 15:
        tags.append(f"W{p}_{ks+1}")
        if ks & 1: tags.append(f"x{p}_{(ks+1)>>1}")
    else: tags.append(f"K{p}_0")
    at(-1, Wait(vm_tags=tags, lg0=True), I("s_barrier"))
    if ks < 15:
        for u in range(8):
            w = wreads(p, ks + 1, u)
            g0 = {6: 27, 7: 6}.get(u, 5 * u + 4)
            at(g0, w[0]); at(g0 + 1, w[1])
        xr = xreads(p, ks + 1)
        for g, q in zip((11, 12, 13, 16, 17), xr): at(g, q)
    else:
        kr = kreads(p, 0)
        for f in range(6): at(5 * f + 5, kr[f])
        at(6, kr[7]); at(8, kr[6])
    if ks <= 12:
        slot = (ks + 3) & 3
        dg = dgroup(f"W{p}_{ks+3}", slot, OPT["wpol"])
        at(0, m0set(sW4k, VB + slot * SLOT))
        for g, q in zip((1, 2, 3, 8), dg): at(g, q)
        at(9, incD())
    elif ks == 13:
        for k, gs in ((0, (0, 1, 2, 3, 8, 9)), (1, (17, 18, 21, 22, 23, 24))):
            dg = dgroup(f"V{p}_{k}", k, OPT["kvpol"])
            at(gs[0], m0set(sW4k, VB + k * SLOT))
            for g, q in zip(gs[1:5], dg): at(g, q)
            at(gs[5], incD())
    elif ks == 14:
        dg = dgroup(f"V{p}_2", 2, OPT["kvpol"])
        at(0, m0set(sW4k, VB + 2 * SLOT))
        for g, q in zip((1, 2, 3, 8), dg): at(g, q)
        at(9, incD())
    else:
        dg = kgroup(f"K{p}_3", 3)
        at(0, m0set(sW4k, KB + 3 * SLOT))
        for g, q in zip((1, 2, 3, 4), dg): at(g, q)
        at(7, I(f"s_add_u32 s{sOffK}, s{sOffK}, 8192"))
    if 1 <= ks <= 12:
        j = (ks - 1) & 3; tile = (ks - 1) >> 2
        at(17, I(f"s_mov_b32 m0, s{sM0K}"))
        at(18, dma(vKd + j, sK, sOffK, 1024 * j, f"K{p}_{tile}", [f"K{tile}"], OPT["kvpol"]))
        if j == 3:
            at(19, I(f"s_add_u32 s{sOffK}, s{sOffK}, 8192"))
            at(20, I(f"s_add_u32 s{sM0K}, s{sM0K}, {SLOT}"))
    if (ks & 1) and ks <= 11:
        j = (ks + 3) >> 1
        xg = xgroup(j)
        for q in xg:
            if q.meta.get("tag"): q.meta["tag"] = f"x{p}_{j}"
        for g, q in zip((20, 21, 22, 23, 26, 30, 31), xg): at(g, q)
        at(32, I(f"s_add_u32 s{sOffX}, s{sOffX}, 128"))
    for g, q in extra_end: at(g, q)
    ops = weave(ms, fx)
    P.emit(name, ops)
    return ops

def qepi(p):
    o = []
    for n in range(20):
        b = vACC + 8 * n
        for k in range(4):
            o.append(I(f"v_pk_mul_f32 v[{b+2*k}:{b+2*k+1}], v[{b+2*k}:{b+2*k+1}], s[{sCS}:{sCS+1}]"))
        for k in range(4):
            o.append(I(f"v_cvt_pk_bf16_f32 v{b+k}, v{b+2*k}, v{b+2*k+1}"))
        for k in range(4):
            o.append(I(f"v_accvgpr_write_b32 a{aQ+4*n+k}, v{b+k}"))
    o = [I("s_nop 7")] + o
    P.emit("QEPI", o)

def qphase(p):
    qfirst(p)
    qstep(p, 0, "Q0")
    for it in range(3):
        for k in range(4):
            ks = 1 + 4 * it + k
            ex = []
            if k == 3:
                ex = [(36, I(f"s_add_u32 s{sCnt}, s{sCnt}, 1")), (37, I(f"s_cmp_lt_u32 s{sCnt}, 3")),
                      (39, I("s_cbranch_scc1 L_qloop"))]
            qstep(p, ks, f"QL{k}", ex)
    P.emit("QSWAP", setD_V())
    for ks in (13, 14, 15): qstep(p, ks, f"Q{ks}")
    qepi(p)

astate = {}
def astep(p, i, name, extra_end=()):
    first = (i == 0)
    ms = []
    for t in range(5):
        for kt in range(2):
            d = rt("v", vS + 8 * t + 4 * kt, 4)
            for s in range(4):
                c = d if s else ("0" if first else rt("v", vNM + 4 * t, 4))
                ms.append(mf(d, rt("a", aKF + 4 * (kt * 4 + s), 4), rt("a", aQ + 4 * (s * 5 + t), 4), c))
    for t in range(5):
        b = rt("v", vS + 8 * t, 4)
        for u in range(8):
            d = rt("v", acc(u, t), 4)
            ms.append(mf(d, rt("a", aVF + 4 * u, 4), b, "0" if first else d))
        d = rt("a", aL + 4 * t, 4)
        ms.append(mf(d, rt("a", aONE, 4), b, "0" if first else d))
    fx = {}
    def at(g, *ops): fx.setdefault(g, []).extend(ops)
    tags = [f"V{p}_{i}"] + ([f"K{p}_{i+1}"] if i < 15 else [])
    at(-1, Wait(vm_tags=tags, lg0=True), I("s_barrier"))
    ks = i & 3
    at(0, m0set(sW4k, KB + ks * SLOT))
    for g, q in zip((1, 2, 3, 4), kgroup(f"K{p}_{i+4}", ks)): at(g, q)
    vs = (i + 3) & 3
    if i <= 12: tag = f"V{p}_{i+3}"
    elif p == 0: tag = f"W1_{i-13}"
    else: tag = f"O_{i-13}"
    at(5, m0set(sW4k, VB + vs * SLOT))
    for g, q in zip((6, 7, 8, 9), dgroup(tag, vs, OPT["kvpol"])): at(g, q)
    vr = []
    for u in range(8):
        for kt in range(2):
            d = aVF + 4 * u + 2 * kt
            vr.append(I(f"ds_read_b64_tr_b16 a[{d}:{d+1}], v{vVr+u} offset:{ks*SLOT + kt*4096}",
                        rtile=f"V{p}_{i}", rslot=[f"V{ks}"]))
    vg = [0, 5] + list(range(11, 36, 2)) + [34]
    for g, q in zip(sorted(vg), vr): at(g, q)
    at(39, Wait(lg_ops=vr))
    kr = kreads(p, i + 1)
    for g, q in zip((54, 57, 63, 66, 72, 75, 76, 77), kr): at(g, q)
    at(79, I(f"s_add_u32 s{sOffK}, s{sOffK}, 8192")); at(80, incD())
    q = []
    for t in range(5):
        b = vS + 8 * t; last = 8 * t + 7
        if first:
            m, m2 = vT, vT + 1
            q += [I(f"v_max3_f32 v{m}, v{b}, v{b+1}, v{b+2}", after=last),
                  I(f"v_max3_f32 v{m}, v{m}, v{b+3}, v{b+4}", after=last),
                  I(f"v_max3_f32 v{m}, v{m}, v{b+5}, v{b+6}", after=last),
                  I(f"v_max_f32 v{m}, v{m}, v{b+7}", after=last),
                  I(f"v_mov_b32 v{m2}, v{m}"), I(f"v_permlane32_swap_b32 v{m2}, v{m}"),
                  I(f"v_max_f32 v{m}, v{m}, v{m2}"),
                  I(f"v_mov_b32 v{m2}, v{m}"), I(f"v_permlane16_swap_b32 v{m2}, v{m}"),
                  I(f"v_max_f32 v{m}, v{m}, v{m2}")]
            q += [I(f"v_sub_f32 v{vNM+4*t+k}, 0, v{m}") for k in range(4)]
            q += [I(f"v_sub_f32 v{b+k}, v{b+k}, v{m}", after=last) for k in range(8)]
        for k in range(8):
            q.append(I(f"v_exp_f32 v{b+k}, v{b+k}", after=(last - 4 if k < 4 and not first else last)))
        for k in range(4):
            q.append(I(f"v_cvt_pk_bf16_f32 v{b+k}, v{b+2*k}, v{b+2*k+1}", after=last))
    for g, x in extra_end: at(g, x)
    ops = weave(ms, fx, reorder(q))
    P.emit(name, ops)
    return ops

def reorder(q): return q

def aphase(p):
    P.emit("APRE", [I(f"s_mov_b32 s{sCnt}, 0")] + stamp_at("A"))
    astep(p, 0, "A0")
    for i in range(1, 16):
        k = (i - 1) & 3
        ex = []
        if k == 2: ex = [(82, I(f"s_cmp_eq_u32 s{sCnt}, 3")), (84, I("s_cbranch_scc1 L_aend"))]
        if k == 3: ex = [(81, I(f"s_add_u32 s{sCnt}, s{sCnt}, 1")), (82, I(f"s_cmp_lt_u32 s{sCnt}, 3")),
                         (84, I("s_cbranch_scc1 L_aloop"))]
        astep(p, i, f"AL{k}", ex)
        if i == 12:
            P.emit("ASWAP", [I(f"s_cmp_eq_u32 s{sPair}, 0"), I("s_cbranch_scc0 L_aswap1")])
            if p == 0: P.emit("ASWAP0", setD_W(512) + [I("s_branch L_aloop")])
            else: P.emit("ASWAP1", setD_O() + [I("s_branch L_aloop")])

stamp_sites = {}
def stamp_at(site):
    return []

def rinv_ops():
    o = [I("s_nop 7")]
    for t in range(5): o.append(I(f"v_accvgpr_read_b32 v{vT+2*t}, a{aL+4*t}"))
    for t in range(5): o.append(I(f"v_rcp_f32 v{vT+2*t}, v{vT+2*t}"))
    return o
def norm_ops(n, dst):
    s, t = divmod(n, 5); b = vACC + 8 * n
    o = [I(f"v_pk_mul_f32 v[{b+2*k}:{b+2*k+1}], v[{b+2*k}:{b+2*k+1}], v[{vT+2*t}:{vT+2*t+1}] op_sel_hi:[1,0]") for k in range(4)]
    o += [I(f"v_cvt_pk_bf16_f32 v{dst+k}, v{b+2*k}, v{b+2*k+1}") for k in range(4)]
    return o

def aend_common():
    P.emit("AEND", [Wait(vm_tags=["Kz"] if False else [], lg0=True), I("s_barrier"),
                    I(f"s_cmp_eq_u32 s{sPair}, 0"), I("s_cbranch_scc0 L_aepi1")])

def aepi0():
    o = rinv_ops()
    for n in range(20):
        b = vACC + 8 * n
        o += norm_ops(n, b)
        o += [I(f"v_accvgpr_write_b32 a{aOP+4*n+k}, v{b+k}") for k in range(4)]
    o += [I(f"s_add_u32 s{sK}, s{sK}, 0x40000"), I(f"s_addc_u32 s{sK+1}, s{sK+1}, 0"),
          I(f"s_add_u32 s{sVb}, s{sVb}, 0x40000"), I(f"s_addc_u32 s{sVb+1}, s{sVb+1}, 0"),
          I(f"s_mov_b32 s{sPair}, 1")]
    o += stamp()
    o += [Wait(vm_tags=["K0_19"]), I("s_barrier"), I("s_branch L_q")]
    P.emit("AEPI0", o)

XB = KB
def aepi1():
    o = []
    A = lambda s: o.extend(I(x.strip()) for x in s.strip().split("\n") if x.strip())
    o += [m0set(sW4k, VB + 3 * SLOT), I("s_nop 0")] + dgroup("O_3", 3, OPT["wpol"])
    o += rinv_ops()
    w, rdv = vT + 10, vT + 11
    A(f"""
    s_mul_i32 s48, s{sWave}, 20480
    s_add_u32 s48, s48, {XB}
    v_lshl_add_u32 v{w}, v{vL}, 4, s48
    s_xor_b32 s48, s{sWave}, 2
    s_mul_i32 s48, s48, 20480
    s_add_u32 s48, s48, {XB}
    v_lshl_add_u32 v{rdv}, v{vL}, 4, s48
    """)
    o += [Wait(vm_tags=["K1_19"]), I("s_barrier")]
    for n in range(20):
        o.append(I(f"ds_write_b128 v{w}, a[{aOP+4*n}:{aOP+4*n+3}] offset:{1024*n}", tag="E0", wslot=["EX"]))
        o += norm_ops(n, vACC + 4 * n)
    o += [Wait(lg0=True), I("s_barrier")]
    o += [I(f"ds_read_b128 a[{160+4*n}:{160+4*n+3}], v{rdv} offset:{1024*n}", rtile="E0", rslot=["EX"]) for n in range(20)]
    o += [Wait(lg0=True), I("s_barrier")]
    o += [I(f"ds_write_b128 v{w}, v[{vACC+4*n}:{vACC+4*n+3}] offset:{1024*n}", tag="E1", wslot=["EX"]) for n in range(20)]
    g, r, c, x, y = (vT + 6 + k for k in range(3)), None, None, None, None
    g, r, c = vNM, vNM + 1, vNM + 2; x, y = vNM + 3, vNM + 4
    A(f"""
    v_lshrrev_b32 v{g}, 4, v{vL}
    v_bfe_u32 v{r}, v{vL}, 2, 2
    v_and_b32 v{c}, 3, v{vL}
    v_lshl_add_u32 v{y}, v{g}, 2, v{r}
    v_bfe_u32 v{x}, v{y}, 1, 2
    v_lshlrev_b32 v{y}, 7, v{y}
    v_lshl_add_u32 v{y}, v{c}, 3, v{y}
    s_and_b32 s48, s{sWave}, 2
    v_xor_b32 v{x}, s48, v{x}
    v_lshl_add_u32 v{y}, v{x}, 5, v{y}
    s_lshl_b32 s48, s48, 13
    s_sub_u32 s49, {SLOT}, s48
    v_add_u32 v{vOr}, s48, v{y}
    v_add_u32 v{vOr+2}, s49, v{y}
    v_xor_b32 v{vOr+1}, 32, v{vOr}
    v_xor_b32 v{vOr+3}, 32, v{vOr+2}
    v_lshl_add_u32 v{vP}, v{vL}, 4, s{sW5k}
    v_add_u32 v{vP+1}, 4096, v{vP}
    s_mov_b32 s{sOffP}, 0x100000
    s_mov_b32 s{sCnt}, 0
    """)
    o += [Wait(vm_tags=["O_0", "O_1"], lg0=True), I("s_barrier")]
    o += [I(f"ds_read_b128 a[{4*n}:{4*n+3}], v{rdv} offset:{1024*n}", rtile="E1", rslot=["EX"]) for n in range(20)]
    fr = []
    for f in range(8): fr += oreads(0, f)
    o += fr
    ostate["first"] = fr; ostate["late"] = None
    o += stamp()
    P.emit("AEPI1", o)

ostate = {}
def ofr(f, par): return vS + 4 * (f + 2) if (f >= 6 and par) else vS + 4 * f
def oreads(t, f):
    z = t & 3; s, nt = f >> 1, f & 1; d = ofr(f, t & 1)
    va = vOr + 2 * (z & 1) + nt; base = (z & 2) * SLOT
    y2 = t & ~1
    tags = [f"O_{y2}", f"O_{y2+1}"] if t < 32 else None
    return [I(f"ds_read_b64_tr_b16 v[{d+2*k}:{d+2*k+1}], v{va} offset:{base + s*4096 + k*2048}",
              rtile=tags, rslot=[f"V{z&2}", f"V{(z&2)+1}"]) for k in range(2)]
def bfrag(z, s, t):
    n = s * 5 + t
    return [rt("a", aOP + 4 * n, 4), rt("a", 160 + 4 * n, 4), rt("v", vACC + 4 * n, 4), rt("a", 4 * n, 4)][z]
def oepi_ops(par):
    cv = []; st = []
    for t in range(5):
        b = vOACC + 40 * par + 8 * t
        cv.append([I(f"v_cvt_pk_bf16_f32 v{vNM+4*t+k}, v{b+2*k}, v{b+2*k+1}") for k in range(4)])
        va, imm = (vP, 1024 * t) if t < 4 else (vP + 1, 0)
        im = f" offset:{imm}" if imm else ""
        st.append(I(f"buffer_store_dwordx4 v[{vNM+4*t}:{vNM+4*t+3}], v{va}, s[{sP}:{sP+3}], s{sOffP} offen{im}{pol(OPT['ppol'])}", tag="pst"))
    return cv, st

def ostage(t, name, extra_end=()):
    z = t & 3; ch = t >> 2; par = ch & 1
    ms = []
    for s in range(4):
        for nt in range(2):
            for q in range(5):
                d = rt("v", vOACC + 40 * par + 8 * q + 4 * nt, 4)
                ms.append(mf(d, rt("v", ofr(2 * s + nt, t & 1), 4), bfrag(z, s, q), "0" if (z == 0 and s == 0) else d))
    fx = {}
    def at(g, *ops): fx.setdefault(g, []).extend(ops)
    if t & 1:
        at(-1, Wait(vm_tags=[f"O_{t+1}", f"O_{t+2}"], lg0=True), I("s_barrier"))
    else:
        at(-1, Wait(lg0=True))
    for f in range(8):
        w = oreads(t + 1, f)
        g0 = {6: 27, 7: 6}.get(f, 5 * f + 4)
        at(g0, w[0]); at(g0 + 1, w[1])
    qv = []
    if t & 1:
        for k, gs in ((0, (0, 1, 2, 3, 8)), (1, (11, 12, 13, 16, 17))):
            tt = t + 3 + k; sl = tt & 3
            pre = []
            if z == 1 and k == 0:
                pass
            at(gs[0], m0set(sW4k, VB + sl * SLOT), I(f"s_add_u32 s{sOffD}, s{sChunk}, {(tt&3)*0x20000}"))
            for g, q in zip(gs[1:], dgroup(f"O_{tt}", sl, OPT["wpol"])): at(g, q)
    if z == 0:
        at(32, I(f"s_add_u32 s{sChunk}, s{sChunk}, 128")); at(32, I(f"s_and_b32 s{sChunk}, s{sChunk}, 0x3ff"))
        if par == 1:
            at(33, I(f"s_cmp_eq_u32 s{sCnt}, 3")); at(36, I(f"s_cselect_b32 s{sChunk}, 0x100000, s{sChunk}"))
        cv, st = oepi_ops(par ^ 1)
        for q in range(5):
            for x in cv[q]: x.meta["after"] = 3
            qv += cv[q]
        for g, x in zip((18, 21, 23, 26, 31), st): at(g, x)
        at(37, I(f"s_mov_b32 s{sOffP}, s{sChunkP}"))
        at(38, I(f"s_add_u32 s{sChunkP}, s{sChunkP}, 20480"), I(f"s_cmp_eq_u32 s{sChunkP}, 163840"))
        at(39, I(f"s_cselect_b32 s{sChunkP}, 0, s{sChunkP}"))
    for g, x in extra_end: at(g, x)
    ops = weave(ms, fx, qv)
    P.emit(name, ops)
    return ops

def ophase():
    for t in range(32):
        ex = []
        if (t & 7) == 7:
            ex = [(36, I(f"s_add_u32 s{sCnt}, s{sCnt}, 1")), (37, I(f"s_cmp_lt_u32 s{sCnt}, 4")), (39, I("s_cbranch_scc1 L_oloop"))]
        ostage(t, f"OL{t&7}", ex)
    cv, st = oepi_ops(1)
    o = [I("s_nop 7")]
    for q in range(5): o += cv[q]
    o += st
    o += stamp()
    if OPT["stamps"]:
        n = nstamp[0]
        o += [I("s_load_dwordx2 s[44:45], s[0:1], 96"), I("s_waitcnt lgkmcnt(0)"),
              I("s_add_u32 s44, s44, 0x4000000"), I("s_addc_u32 s45, s45, 0"),
              I(f"s_mul_i32 s46, s2, {8*n}"), I(f"v_mov_b32 v{vT+2}, s46"), I(f"s_cmp_eq_u32 s{sWave}, 0"), I("s_cbranch_scc0 L_nost")]
        for k in range(n):
            o += [I(f"v_mov_b32 v{vT}, s{sST+2*k}"), I(f"v_mov_b32 v{vT+1}, s{sST+2*k+1}"),
                  I(f"global_store_dwordx2 v{vT+2}, v[{vT}:{vT+1}], s[44:45] offset:{8*k}"), I("s_nop 1")]
        o += [Label("L_nost")]
    o += [I("s_waitcnt vmcnt(0) lgkmcnt(0)")]
    P.emit("FIN", o)

def reduce_kernel():
    L = []
    A = lambda s: L.extend("  " + x.strip() for x in s.strip().split("\n") if x.strip())
    A(f"""
    s_cmp_ge_u32 s2, 1280
    s_cbranch_scc1 L_rend
    s_load_dwordx2 s[4:5], s[0:1], 96
    s_load_dwordx2 s[8:9], s[0:1], 80
    v_lshrrev_b32 v1, 6, v0
    v_and_b32 v0, 63, v0
    v_readfirstlane_b32 s3, v1
    s_lshl_b32 s12, s2, 2
    s_add_u32 s12, s12, s3
    s_mul_hi_u32 s13, s12, 26843546
    s_mul_i32 s14, s13, 160
    s_sub_u32 s14, s12, s14
    s_mul_i32 s15, s13, 1310720
    s_lshl_b32 s16, s14, 10
    s_add_u32 s15, s15, s16
    v_lshl_add_u32 v2, v0, 4, s15
    s_waitcnt lgkmcnt(0)
    s_mov_b32 s6, 41943040
    s_mov_b32 s7, 0x20000
    s_mov_b32 s10, 5242880
    s_mov_b32 s11, 0x20000
    """)
    for k in range(8):
        A(f"s_mov_b32 s20, {163840*k}\nbuffer_load_dwordx4 v[{8+4*k}:{11+4*k}], v2, s[4:7], s20 offen{pol(OPT.get('rpol',''))}")
    A(f"""
    s_mul_hi_u32 s16, s14, 214748365
    s_mul_i32 s17, s16, 20
    s_sub_u32 s17, s14, s17
    s_mul_hi_u32 s18, s17, 858993460
    s_mul_i32 s19, s18, 5
    s_sub_u32 s19, s17, s19
    s_and_b32 s21, s13, 15
    s_mul_i32 s21, s21, 160
    s_and_b32 s22, s18, 1
    s_mul_i32 s22, s22, 80
    s_add_u32 s21, s21, s22
    s_lshl_b32 s22, s19, 4
    s_add_u32 s21, s21, s22
    s_lshl_b32 s21, s21, 11
    s_lshr_b32 s22, s13, 4
    s_lshl_b32 s22, s22, 10
    s_add_u32 s21, s21, s22
    s_lshl_b32 s22, s16, 7
    s_add_u32 s21, s21, s22
    s_lshr_b32 s22, s18, 1
    s_lshl_b32 s22, s22, 6
    s_add_u32 s21, s21, s22
    v_and_b32 v3, 15, v0
    v_lshlrev_b32 v3, 11, v3
    v_lshrrev_b32 v4, 5, v0
    v_lshl_add_u32 v3, v4, 4, v3
    v_bfe_u32 v4, v0, 4, 1
    v_lshl_add_u32 v3, v4, 5, v3
    s_mov_b32 s23, 0xffff0000
    """)
    for k in range(8):
        A(f"s_waitcnt vmcnt({7-k})")
        for j in range(4):
            src = 8 + 4 * k + j
            if k == 0:
                A(f"v_lshlrev_b32 v{40+2*j}, 16, v{src}\nv_and_b32 v{41+2*j}, s23, v{src}")
            else:
                A(f"v_lshlrev_b32 v5, 16, v{src}\nv_and_b32 v6, s23, v{src}\nv_add_f32 v{40+2*j}, v{40+2*j}, v5\nv_add_f32 v{41+2*j}, v{41+2*j}, v6")
    for j in range(4): A(f"v_cvt_pk_bf16_f32 v{48+j}, v{40+2*j}, v{41+2*j}")
    A("""
    s_nop 1
    v_permlane16_swap_b32 v48, v50
    v_permlane16_swap_b32 v49, v51
    v_mov_b32 v52, v48
    v_mov_b32 v53, v49
    v_mov_b32 v54, v50
    v_mov_b32 v55, v51
    buffer_store_dwordx4 v[52:55], v3, s[8:11], s21 offen
    s_waitcnt vmcnt(0)
    """)
    L.append("L_rend:\n  s_endpgm")
    return "\n".join(L) + "\n"

def dump_regs(f, start, n, name):
    o = [I("s_nop 7"), I("s_waitcnt vmcnt(0) lgkmcnt(0)"), I("s_load_dwordx2 s[44:45], s[0:1], 96"), I("s_waitcnt lgkmcnt(0)"),
         I(f"s_lshl_b32 s46, s2, 2"), I(f"s_add_u32 s46, s46, s{sWave}"), I(f"s_mul_i32 s46, s46, {n*256}"),
         I(f"v_lshl_add_u32 v{vT}, v{vL}, 4, s46")]
    for k in range(n // 4):
        o += [I(f"global_store_dwordx4 v{vT}, {rt(f, start+4*k, 4)}, s[44:45]"), I(f"v_add_u32 v{vT}, 1024, v{vT}")]
    o += [I("s_waitcnt vmcnt(0)"), I("s_endpgm")]
    P.emit(name, o)

def build():
    prologue(); qpre(0); touches()
    lay = ["PRO", "QPRE0:", "QPRE"]
    P.emit("QGATE", [I(f"s_cmp_eq_u32 s{sPair}, 0"), I("s_cbranch_scc0 L_qfirst")])
    tr = P.trace; tr[-1], tr[-2] = tr[-2], tr[-1]
    qphase(0)
    d = OPT["dump"]
    if d == "q0": dump_regs("a", aQ, 80, "DUMP")
    else:
        aphase(0); aend_common();
        if d == "o0":
            aepi0(); P.trace[-1][1].pop(); dump_regs("a", aOP, 80, "DUMP")
        else:
            aepi0(); qpre(1)
            P.emit("QGATE", [I(f"s_cmp_eq_u32 s{sPair}, 0"), I("s_cbranch_scc0 L_qfirst")])
            qphase(1); aphase(1); aend_common(); aepi1(); ophase()
    order = ["PRO", "L_q:", "QPRE", "QGATE", "TOUCH", "L_qfirst:", "QFIRST", "Q0", "L_qloop:", "QL0", "QL1", "QL2", "QL3",
             "QSWAP", "Q13", "Q14", "Q15", "QEPI"]
    if d == "q0":
        order += ["DUMP"]
    else:
        order += ["APRE", "A0", "L_aloop:", "AL0", "AL1", "AL2", "AL3", "ASWAP", "ASWAP0", "L_aswap1:"]
        if d == "o0": order += ["  s_endpgm", "L_aend:", "AEND", "AEPI0", "DUMP", "L_aepi1:"]
        else: order += ["ASWAP1", "L_aend:", "AEND", "AEPI0", "L_aepi1:", "AEPI1", "L_oloop:"] + [f"OL{k}" for k in range(8)] + ["FIN"]
    order += ["L_end:", "  s_endpgm"]
    P.layout = order
    P.resolve_waits()
    errs = P.verify()
    for e in errs[:40]: print("VERIFY:", e, file=sys.stderr)
    tot = 0
    seen = {}
    for n, ops in P.trace:
        c = estimate(ops); tot += c; seen.setdefault(n, [0, c, len(ops)])[0] += 1
    print("est cycles:", tot, {k: v for k, v in seen.items()}, file=sys.stderr)
    assert not errs
    ref = open(os.path.join(os.path.dirname(os.path.abspath(__file__)), "..", "cdna_kernels", KN[:-7] + ".s.ref")).read()
    hdr = [l for l in ref.split("\n") if l.startswith(";") and "@launch" not in l and "Override" not in l and "grid=ceil" not in l]
    out = "\n".join(hdr) + "\n"
    two = not d
    out += f"; @launch kernel={KN} grid=(256,1,1) block=(256,1,1) lds=163840\n"
    if two: out += f"; @launch kernel={RN} grid=(1280,1,1) block=(256,1,1) lds=0\n"
    out += '.amdgcn_target "amdgcn-amd-amdhsa--gfx950"\n.text\n'
    out += f".globl {KN}\n.p2align 8\n.type {KN},@function\n{KN}:\n" + P.text()
    if two: out += f".globl {RN}\n.p2align 8\n.type {RN},@function\n{RN}:\n" + reduce_kernel()
    out += '.section .rodata,"a"\n'
    def kd(n, v, a, s):
        return (f".p2align 6\n.amdhsa_kernel {n}\n  .amdhsa_next_free_vgpr {v}\n  .amdhsa_next_free_sgpr {s}\n"
                f"  .amdhsa_accum_offset {a}\n  .amdhsa_group_segment_fixed_size 0\n  .amdhsa_kernarg_size 104\n"
                "  .amdhsa_user_sgpr_count 2\n  .amdhsa_user_sgpr_kernarg_segment_ptr 1\n"
                "  .amdhsa_system_sgpr_workgroup_id_x 1\n.end_amdhsa_kernel\n")
    out += kd(KN, 512, 256, 102)
    if two: out += kd(RN, 56, 56, 32)
    sys.stdout.write(out)

build()
```

```python
import sys, os, math, struct
sys.path.insert(0, os.path.dirname(os.path.abspath(__file__)))
from fw import *

KN = "concat_heads__mha_block_cached__gqa_block_cached__near_ridge_kernel"
RN = "reduce_partials_kernel"
OPT = dict(stamps=0, dump="", kvpol="nt", wpol="", ppol="sc1", touch=3)
for a in sys.argv[1:]:
    k, v = a.split("=")
    OPT[k] = int(v) if v.lstrip("-").isdigit() else v
def pol(x): return (" " + x.replace("+", " ")) if x else ""

VB = 0; KB = 65536; XO = 114688; XE = 135168
SLOT = 16384
vL = 0
vKr = 1; vVr = 5; vKd = 13; vDd = 17; vV0 = 21; vW0 = 22; vO0 = 23
vT = 24
vNM = 36
vXd = 36; vWr = 41; vXr = 45
vS = 56
vACC = 96
vOr = 24; vP = 28
vOACC = 176
aQ = 0; aOP = 80; aKF = 160; aVF = 192; aL = 224; aONE = 244; aW7 = 248; aW6 = 252; aXF = 192
sX = 4; sK = 8; sD = 12; sP = 16
sVb = 20; sWb = 22; sOb = 24
sWn = 26
sWave = 27; sW4k = 28; sW5k = 29
sOffK = 30; sOffD = 31; sIncD = 32; sOffX = 33; sM0K = 34; sCnt = 35; sPair = 36
sChunk = 37; sOffP = 38; sCS = 40
sTmp = 42
sCurP = 50; sCurF = 3; sOffF = 39
sF = 52; sDbg = 56; sNonce = 100; sHg = 101
FLAG_OFF = 36700160
vPoll = 30; vNon = 31; vFp = 32; vFc = 33; vOut = 34; aID = 240
sST = 60
CSCALE = struct.unpack("<I", struct.pack("<f", math.log2(math.e) / math.sqrt(128.0)))[0]

P = Prog(); P.tile_slots = {}
nstamp = [0]
sSI = 51
def stamp(clock=False):
    if not OPT["stamps"]: return []
    nstamp[0] += 1
    ins = "s_memtime" if clock else "s_memrealtime"
    return [I("s_waitcnt lgkmcnt(0)"), I(f"{ins} s[58:59]"), I(f"s_mov_b32 m0, s{sSI}"), I("s_waitcnt lgkmcnt(0)"),
            I(f"s_movreld_b64 s[{sST}:{sST+1}], s[58:59]"), I(f"s_add_u32 s{sSI}, s{sSI}, 2")]

def mf(d, a, b, c):
    return I(f"v_mfma_f32_16x16x32_bf16 {d}, {a}, {b}, {c}")
def dma(v, srd, soff, imm, tag, slots, p):
    o = f" offset:{imm}" if imm else ""
    return I(f"buffer_load_dwordx4 v{v}, s[{srd}:{srd+3}], s{soff} offen{o}{pol(p)} lds", tag=tag, wslot=slots)
def m0set(base, c): return I(f"s_add_u32 m0, s{base}, {c}")
def dgroup(tag, slot, p):
    return [dma(vDd + j, sD, sOffD, 1024 * j, tag, [f"V{slot}"], p) for j in range(4)]
def kgroup(tag, slot):
    sl = [f"K{slot}"] + (["XO"] if slot == 3 else [])
    return [dma(vKd + j, sK, sOffK, 1024 * j, tag, sl, OPT["kvpol"]) for j in range(4)]
def xslots(par): return ["XO", "K3"] if par else ["XE"]
def xgroup(j):
    par = j & 1; base = XO if par else XE
    ops = [m0set(sW5k, base)]
    ops += [dma(vXd + i, sX, sOffX, 1024 * i, f"x{j}", xslots(par), OPT["wpol"]) for i in range(4)]
    ops += [m0set(sW5k, base + 4096), dma(vXd + 4, sX, sOffX, 0, f"x{j}", xslots(par), OPT["wpol"])]
    return ops

def acc(u, t): return vACC + ((u >> 1) * 5 + t) * 8 + (u & 1) * 4
def wf(u, par): return (aW7 if u == 7 else aW6) if (u >= 6 and par) else aKF + 4 * u

def setD_V():
    return [I(f"s_mov_b32 s{sD}, s{sVb}"), I(f"s_mov_b32 s{sD+1}, s{sVb+1}"), I(f"s_mov_b32 s{sD+2}, 0x20000"),
            I(f"s_mov_b32 s{sOffD}, 0"), I(f"s_mov_b32 s{sIncD}, 8192"),
            I(f"v_mov_b32 v{vDd}, v{vV0}"), I(f"v_xor_b32 v{vDd+1}, 0x80, v{vV0}"),
            I(f"v_mov_b32 v{vDd+2}, v{vV0}"), I(f"v_xor_b32 v{vDd+3}, 0x80, v{vV0}")]
def setD_W(coloff):
    return [I(f"s_mov_b32 s{sD}, s{sWb}"), I(f"s_mov_b32 s{sD+1}, s{sWb+1}"), I(f"s_mov_b32 s{sD+2}, s{sWn}"),
            I(f"s_mov_b32 s{sOffD}, {coloff}"), I(f"s_mov_b32 s{sIncD}, 0x40000"),
            I(f"v_mov_b32 v{vDd}, v{vW0}")] + [I(f"v_add_u32 v{vDd+j}, {31744*j}, v{vW0}") for j in (1, 2, 3)]
def setD_O():
    return [I(f"s_mov_b32 s{sD}, s{sOb}"), I(f"s_mov_b32 s{sD+1}, s{sOb+1}"), I(f"s_mov_b32 s{sD+2}, 0x80000"),
            I(f"s_mov_b32 s{sOffD}, s{sChunk}"), I(f"s_mov_b32 s{sIncD}, 0x20000"),
            I(f"v_mov_b32 v{vDd}, v{vO0}")] + [I(f"v_add_u32 v{vDd+j}, {7168*j}, v{vO0}") for j in (1, 2, 3)]
incD = lambda: I(f"s_add_u32 s{sOffD}, s{sOffD}, s{sIncD}")

def prologue():
    o = []
    A = lambda s: o.extend(I(x.strip()) for x in s.strip().split("\n") if x.strip())
    A(f"""
    s_cmp_ge_u32 s2, 256
    s_cbranch_scc1 L_end
    s_and_b32 s42, s2, 7
    s_lshr_b32 s43, s2, 3
    s_lshr_b32 s44, s42, 2
    s_mul_i32 s45, s44, 40
    s_add_u32 s46, s0, s45
    s_addc_u32 s47, s1, 0
    s_load_dwordx4 s[52:55], s[46:47], 0
    s_load_dwordx4 s[56:59], s[46:47], 16
    s_load_dwordx2 s[{sOb}:{sOb+1}], s[46:47], 32
    s_load_dwordx4 s[96:99], s[0:1], 88
    v_lshrrev_b32 v{vT}, 6, v0
    v_and_b32 v{vL}, 63, v0
    v_readfirstlane_b32 s{sWave}, v{vT}
    s_and_b32 s45, s42, 3
    s_lshl_b32 s45, s45, 1
    s_and_b32 s46, s43, 1
    s_add_u32 s45, s45, s46
    s_lshr_b32 s43, s43, 1
    """)
    A(f"""
    s_lshl_b32 s{sW4k}, s{sWave}, 12
    s_mul_i32 s{sW5k}, s{sWave}, 5120
    s_lshr_b32 s46, s{sWave}, 1
    s_and_b32 s47, s{sWave}, 1
    s_waitcnt lgkmcnt(0)
    s_mul_i32 s48, s43, 163840
    s_add_u32 s{sX}, s52, s48
    s_addc_u32 s{sX+1}, s53, 0
    s_mov_b32 s{sX+2}, 163840
    s_mov_b32 s{sX+3}, 0x20000
    s_lshl_b32 s48, s45, 10
    s_lshl_b32 s49, s46, 8
    s_add_u32 s48, s48, s49
    s_add_u32 s{sWb}, s58, s48
    s_addc_u32 s{sWb+1}, s59, 0
    s_sub_u32 s{sWn}, 0x400000, s48
    s_mov_b32 s{sD+3}, 0x20000
    s_lshl_b32 s48, s43, 5
    s_lshl_b32 s49, s45, 2
    s_add_u32 s48, s48, s49
    s_add_u32 s48, s48, s46
    s_lshl_b32 s48, s48, 17
    s_add_u32 s{sK}, s54, s48
    s_addc_u32 s{sK+1}, s55, 0
    s_mov_b32 s{sK+2}, 0x20000
    s_mov_b32 s{sK+3}, 0x20000
    s_add_u32 s{sVb}, s56, s48
    s_addc_u32 s{sVb+1}, s57, 0
    s_lshl_b32 s48, s45, 19
    s_add_u32 s{sOb}, s{sOb}, s48
    s_addc_u32 s{sOb+1}, s{sOb+1}, 0
    s_lshl_b32 s48, s44, 4
    s_add_u32 s48, s48, s43
    s_mul_i32 s49, s48, 1146880
    s_add_u32 s{sP}, s98, s49
    s_addc_u32 s{sP+1}, s99, 0
    s_mov_b32 s{sP+2}, 1146880
    s_mov_b32 s{sP+3}, 0x20000
    s_lshl_b32 s49, s48, 10
    s_add_u32 s49, s49, {FLAG_OFF}
    s_add_u32 s{sF}, s98, s49
    s_addc_u32 s{sF+1}, s99, 0
    s_mov_b32 s{sF+2}, 1024
    s_mov_b32 s{sF+3}, 0x20000
    s_lshl_b32 s49, s48, 2
    s_add_u32 s{sDbg}, s96, s49
    s_addc_u32 s{sDbg+1}, s97, 0
    s_mov_b32 s{sHg}, s45
    s_add_u32 s48, s45, 1
    s_and_b32 s48, s48, 7
    s_lshl_b32 s{sChunk}, s48, 7
    s_mov_b32 s{sCurF}, s{sChunk}
    s_mul_i32 s{sCurP}, s48, 143360
    s_mov_b32 s{sCS}, {CSCALE}
    s_mov_b32 s{sCS+1}, {CSCALE}
    s_mov_b32 s{sPair}, 0
    """)
    if OPT["stamps"]: A(f"s_mov_b32 s{sSI}, 0")
    o += stamp() + stamp(True)
    g, i15, r, c, x, y = (vT + k for k in range(6))
    A(f"""
    v_lshrrev_b32 v{g}, 4, v{vL}
    v_and_b32 v{i15}, 15, v{vL}
    v_bfe_u32 v{r}, v{vL}, 2, 2
    v_and_b32 v{c}, 3, v{vL}
    s_lshl_b32 s48, s47, 17
    v_lshlrev_b32 v{x}, 2, v{g}
    v_xor_b32 v{x}, v{x}, v{i15}
    v_lshlrev_b32 v{x}, 4, v{x}
    v_lshl_add_u32 v{x}, v{g}, 13, v{x}
    v_add_u32 v{vW0}, s48, v{x}
    """)
    A(f"v_lshlrev_b32 v{y}, 4, v{vL}")
    o.append(I(f"buffer_load_dwordx4 v[{vS}:{vS+3}], v{y}, s[{sF}:{sF+3}], 0 offen sc1", tag="stale"))
    o += setD_W(0)
    for ks in range(3):
        o += [m0set(sW4k, VB + ks * SLOT), I("s_nop 0")] + dgroup(f"W0_{ks}", ks, OPT["wpol"]) + [incD()]
    A(f"""
    s_lshl_b32 s48, s47, 12
    v_lshl_add_u32 v{y}, v{g}, 8, s48
    v_xor_b32 v{x}, v{g}, v{i15}
    """)
    for j in range(4):
        A(f"v_xor_b32 v{vKd+j}, {4*j}, v{x}\nv_lshl_add_u32 v{vKd+j}, v{vKd+j}, 4, v{y}")
    A(f"""
    v_lshlrev_b32 v{x}, 1, v{g}
    v_xor_b32 v{x}, v{x}, v{i15}
    v_lshl_add_u32 v{vV0}, v{x}, 4, v{y}
    s_lshl_b32 s48, s{sWave}, 15
    v_lshrrev_b32 v{y}, 3, v{vL}
    v_lshl_add_u32 v{y}, v{y}, 10, s48
    v_lshlrev_b32 v{x}, 1, v{g}
    v_and_b32 v{vO0}, 7, v{vL}
    v_xor_b32 v{x}, v{x}, v{vO0}
    v_lshl_add_u32 v{vO0}, v{x}, 4, v{y}
    s_lshl_b32 s48, s46, 13
    s_add_u32 s49, s48, {KB}
    v_lshl_add_u32 v{y}, v{i15}, 8, s49
    v_xor_b32 v{x}, v{g}, v{i15}
    """)
    for s in range(4):
        A(f"v_xor_b32 v{vKr+s}, {4*s}, v{x}\nv_lshl_add_u32 v{vKr+s}, v{vKr+s}, 4, v{y}")
    A(f"""
    v_lshl_add_u32 v{y}, v{g}, 2, v{r}
    v_and_b32 v{x}, 7, v{y}
    v_lshl_add_u32 v{y}, v{y}, 8, s48
    v_lshl_add_u32 v{y}, v{c}, 3, v{y}
    """)
    for u in range(8):
        A(f"v_xor_b32 v{vVr+u}, {u}, v{x}\nv_lshl_add_u32 v{vVr+u}, v{vVr+u}, 5, v{y}")
    A(f"v_mov_b32 v{x}, 0x3f803f80")
    for k in range(4): A(f"v_accvgpr_write_b32 a{aONE+k}, v{x}")
    P.emit("PRO", o)

def touch_x(o, first_line, dst):
    A = lambda s: o.extend(I(x.strip()) for x in s.strip().split("\n") if x.strip())
    x, y = vT + 4, vT + 5
    A(f"""
    v_lshrrev_b32 v{y}, 3, v{vL}
    v_and_b32 v{x}, 7, v{vL}
    v_max_u32 v{x}, {first_line}, v{x}
    v_lshlrev_b32 v{x}, 7, v{x}
    v_lshl_add_u32 v{x}, v{y}, 10, v{x}
    s_mul_i32 s48, s{sWave}, 40960
    """)
    for k in range(5):
        o.append(I(f"buffer_load_dword v{dst}, v{x}, s[{sX}:{sX+3}], s48 offen{pol(OPT['wpol'])}", tag="touch", waw_ok=True))
        if k < 4: A("s_add_u32 s48, s48, 8192")
def touch_w(o, coloff, dst):
    A = lambda s: o.extend(I(x.strip()) for x in s.strip().split("\n") if x.strip())
    x, y = vT + 4, vT + 5
    A(f"""
    s_lshr_b32 s48, s2, 4
    s_mul_i32 s48, s48, 26
    s_and_b32 s49, s{sWave}, 1
    s_mul_i32 s49, s49, 13
    s_add_u32 s48, s48, s49
    s_add_u32 s48, s48, 96
    s_lshl_b32 s48, s48, 13
    s_add_u32 s48, s48, {coloff}
    v_lshrrev_b32 v{y}, 1, v{vL}
    v_min_u32 v{y}, 12, v{y}
    v_and_b32 v{x}, 1, v{vL}
    v_lshlrev_b32 v{x}, 7, v{x}
    v_lshl_add_u32 v{x}, v{y}, 13, v{x}
    """)
    o.append(I(f"buffer_load_dword v{dst}, v{x}, s[{sD}:{sD+3}], s48 offen{pol(OPT['wpol'])}", tag="touch", waw_ok=True))
def touch_o(o, dst):
    A = lambda s: o.extend(I(x.strip()) for x in s.strip().split("\n") if x.strip())
    x = vT + 4
    A(f"""
    s_lshr_b32 s48, s2, 4
    s_lshl_b32 s48, s48, 2
    s_add_u32 s48, s48, s{sWave}
    s_lshl_b32 s48, s48, 13
    v_lshlrev_b32 v{x}, 7, v{vL}
    """)
    o.append(I(f"buffer_load_dword v{dst}, v{x}, s[{sD}:{sD+3}], s48 offen{pol(OPT['wpol'])}", tag="touch", waw_ok=True))

def touches():
    o = []
    if OPT["touch"] & 1:
        touch_w(o, 0, vT + 11)
        touch_x(o, 2, vT + 11)
    P.emit("TOUCH", o)

def qpre(p):
    o = []
    A = lambda s: o.extend(I(x.strip()) for x in s.strip().split("\n") if x.strip())
    g, i15, r, c, x, y = (vT + k for k in range(6))
    A(f"""
    v_lshrrev_b32 v{g}, 4, v{vL}
    v_and_b32 v{x}, 7, v{vL}
    v_xor_b32 v{x}, v{x}, v{g}
    s_and_b32 s48, s{sWave}, 1
    s_lshl_b32 s48, s48, 2
    v_xor_b32 v{x}, s48, v{x}
    v_lshrrev_b32 v{y}, 3, v{vL}
    s_mul_i32 s49, s{sWave}, 40960
    v_lshl_add_u32 v{y}, v{y}, 10, s49
    v_lshl_add_u32 v{vXd}, v{x}, 4, v{y}
    v_xor_b32 v{x}, 64, v{vXd}
    v_add_u32 v{vXd+1}, 7168, v{x}
    v_add_u32 v{vXd+2}, 14336, v{vXd}
    v_add_u32 v{vXd+3}, 21504, v{x}
    v_add_u32 v{vXd+4}, 32768, v{vXd}
    s_mov_b32 s{sOffX}, 0
    """)
    xg = xgroup(0); xg.insert(1, I("s_nop 0")); xg.insert(-1, I("s_nop 0"))
    for q in xg:
        if q.meta.get("tag"): q.meta["tag"] = f"x{p}_0"
    o += xg + [I(f"s_add_u32 s{sOffX}, s{sOffX}, 128")]
    xg = xgroup(1); xg.insert(1, I("s_nop 0")); xg.insert(-1, I("s_nop 0"))
    for q in xg:
        if q.meta.get("tag"): q.meta["tag"] = f"x{p}_1"
    o += xg + [I(f"s_add_u32 s{sOffX}, s{sOffX}, 128")]
    A(f"""
    v_and_b32 v{i15}, 15, v{vL}
    v_bfe_u32 v{r}, v{vL}, 2, 2
    v_and_b32 v{c}, 3, v{vL}
    s_lshr_b32 s48, s{sWave}, 1
    s_lshl_b32 s48, s48, 13
    v_lshl_add_u32 v{y}, v{g}, 3, v{r}
    v_lshl_add_u32 v{y}, v{y}, 8, s48
    v_lshl_add_u32 v{y}, v{c}, 4, v{y}
    """)
    for s in range(4):
        A(f"v_xor_b32 v{vWr+s}, {s}, v{r}\nv_lshl_add_u32 v{vWr+s}, v{vWr+s}, 6, v{y}")
    A(f"""
    s_and_b32 s48, s{sWave}, 1
    s_mul_i32 s48, s48, 10240
    s_add_u32 s48, s48, {XO}
    v_lshl_add_u32 v{y}, v{i15}, 7, s48
    v_lshrrev_b32 v{x}, 1, v{i15}
    v_xor_b32 v{x}, v{x}, v{g}
    v_lshl_add_u32 v{vXr}, v{x}, 4, v{y}
    v_xor_b32 v{vXr+1}, 64, v{vXr}
    s_mov_b32 s{sOffK}, 0
    s_add_u32 s{sM0K}, s{sW4k}, {KB}
    s_mov_b32 s{sCnt}, 0
    """)
    P.emit("QPRE", o)

def wreads(p, ks, u):
    par = ks & 1; s, e = u >> 1, u & 1; slot = ks & 3; d = wf(u, par)
    return [I(f"ds_read_b64_tr_b16 a[{d+2*h}:{d+2*h+1}], v{vWr+s} offset:{slot*SLOT + h*1024 + 8*e}",
              rtile=f"W{p}_{ks}", rslot=[f"V{slot}"]) for h in range(2)]
def xreads(p, ks):
    j = ks >> 1; kk = ks & 1; boff = 0 if (j & 1) else XE - XO
    return [I(f"ds_read_b128 a[{aXF+20*kk+4*t}:{aXF+20*kk+4*t+3}], v{vXr+kk} offset:{boff + t*2048}",
              rtile=f"x{p}_{j}", rslot=xslots(j & 1)) for t in range(5)]
def kreads(p, i):
    slot = i & 3
    return [I(f"ds_read_b128 a[{aKF+4*f}:{aKF+4*f+3}], v{vKr+(f&3)} offset:{slot*SLOT + (f>>2)*4096}",
              rtile=(f"K{p}_{i}" if i < 16 else None), rslot=[f"K{slot}"]) for f in range(8)]

qstate = {}
def qfirst(p):
    o = [Wait(vm_tags=[f"x{p}_0", f"W{p}_0"]), I("s_barrier")] + stamp()
    rd = xreads(p, 0)
    for u in range(8): rd += wreads(p, 0, u)
    qstate["first"] = rd
    o += rd
    P.emit("QFIRST", o)

def qstep(p, ks, name, extra_end=()):
    par = ks & 1
    ms = []
    for u in range(8):
        for t in range(5):
            a = acc(u, t); d = rt("v", a, 4)
            ms.append(mf(d, rt("a", wf(u, par), 4), rt("a", aXF + 20 * par + 4 * t, 4), "0" if ks == 0 else d))
    fx = {}
    def at(g, *ops): fx.setdefault(g, []).extend(ops)
    tags = []
    if ks < 15:
        tags.append(f"W{p}_{ks+1}")
        if ks & 1: tags.append(f"x{p}_{(ks+1)>>1}")
    else: tags.append(f"K{p}_0")
    at(-1, Wait(vm_tags=tags, lg0=True), I("s_barrier"))
    if ks < 15:
        for u in range(8):
            w = wreads(p, ks + 1, u)
            g0 = {6: 27, 7: 6}.get(u, 5 * u + 4)
            at(g0, w[0]); at(g0 + 1, w[1])
        xr = xreads(p, ks + 1)
        for g, q in zip((11, 12, 13, 16, 17), xr): at(g, q)
    else:
        kr = kreads(p, 0)
        for f in range(6): at(5 * f + 5, kr[f])
        at(6, kr[7]); at(8, kr[6])
    if ks <= 12:
        slot = (ks + 3) & 3
        dg = dgroup(f"W{p}_{ks+3}", slot, OPT["wpol"])
        at(0, m0set(sW4k, VB + slot * SLOT))
        for g, q in zip((1, 2, 3, 8), dg): at(g, q)
        at(9, incD())
    elif ks == 13:
        for k, gs in ((0, (0, 1, 2, 3, 8, 9)), (1, (17, 18, 21, 22, 23, 24))):
            dg = dgroup(f"V{p}_{k}", k, OPT["kvpol"])
            at(gs[0], m0set(sW4k, VB + k * SLOT))
            for g, q in zip(gs[1:5], dg): at(g, q)
            at(gs[5], incD())
    elif ks == 14:
        dg = dgroup(f"V{p}_2", 2, OPT["kvpol"])
        at(0, m0set(sW4k, VB + 2 * SLOT))
        for g, q in zip((1, 2, 3, 8), dg): at(g, q)
        at(9, incD())
    else:
        dg = kgroup(f"K{p}_3", 3)
        at(0, m0set(sW4k, KB + 3 * SLOT))
        for g, q in zip((1, 2, 3, 4), dg): at(g, q)
        at(7, I(f"s_add_u32 s{sOffK}, s{sOffK}, 8192"))
    if 1 <= ks <= 12:
        j = (ks - 1) & 3; tile = (ks - 1) >> 2
        at(17, I(f"s_mov_b32 m0, s{sM0K}"))
        at(18, dma(vKd + j, sK, sOffK, 1024 * j, f"K{p}_{tile}", [f"K{tile}"], OPT["kvpol"]))
        if j == 3:
            at(19, I(f"s_add_u32 s{sOffK}, s{sOffK}, 8192"))
            at(20, I(f"s_add_u32 s{sM0K}, s{sM0K}, {SLOT}"))
    if (ks & 1) and ks <= 11:
        j = (ks + 3) >> 1
        xg = xgroup(j)
        for q in xg:
            if q.meta.get("tag"): q.meta["tag"] = f"x{p}_{j}"
        for g, q in zip((20, 21, 22, 23, 26, 30, 31), xg): at(g, q)
        at(32, I(f"s_add_u32 s{sOffX}, s{sOffX}, 128"))
    for g, q in extra_end: at(g, q)
    ops = weave(ms, fx)
    P.emit(name, ops)
    return ops

def qepi(p):
    o = []
    for n in range(20):
        b = vACC + 8 * n
        for k in range(4):
            o.append(I(f"v_pk_mul_f32 v[{b+2*k}:{b+2*k+1}], v[{b+2*k}:{b+2*k+1}], s[{sCS}:{sCS+1}]"))
        for k in range(4):
            o.append(I(f"v_cvt_pk_bf16_f32 v{b+k}, v{b+2*k}, v{b+2*k+1}"))
        for k in range(4):
            o.append(I(f"v_accvgpr_write_b32 a{aQ+4*n+k}, v{b+k}"))
    o = [I("s_nop 7")] + stamp() + o + stamp()
    P.emit("QEPI", o)

def qphase(p):
    qfirst(p)
    qstep(p, 0, "Q0")
    for it in range(3):
        for k in range(4):
            ks = 1 + 4 * it + k
            ex = []
            if k == 3:
                ex = [(36, I(f"s_add_u32 s{sCnt}, s{sCnt}, 1")), (37, I(f"s_cmp_lt_u32 s{sCnt}, 3")),
                      (39, I("s_cbranch_scc1 L_qloop"))]
            qstep(p, ks, f"QL{k}", ex)
    P.emit("QSWAP", setD_V() + [I(f"s_or_b32 s48, s{sPair}, s{sHg}"), I(f"s_or_b32 s48, s48, s{sWave}"),
                                I("s_cmp_eq_u32 s48, 0"), I("s_cbranch_scc1 L_pick"), Label("L_picked")])
    for ks in (13, 14, 15): qstep(p, ks, f"Q{ks}")
    qepi(p)

astate = {}
def astep(p, i, name, extra_end=()):
    first = (i == 0)
    ms = []
    for t in range(5):
        for kt in range(2):
            d = rt("v", vS + 8 * t + 4 * kt, 4)
            for s in range(4):
                c = d if s else ("0" if first else rt("v", vNM + 4 * t, 4))
                ms.append(mf(d, rt("a", aKF + 4 * (kt * 4 + s), 4), rt("a", aQ + 4 * (s * 5 + t), 4), c))
    for t in range(5):
        b = rt("v", vS + 8 * t, 4)
        for u in range(8):
            d = rt("v", acc(u, t), 4)
            ms.append(mf(d, rt("a", aVF + 4 * u, 4), b, "0" if first else d))
        d = rt("a", aL + 4 * t, 4)
        ms.append(mf(d, rt("a", aONE, 4), b, "0" if first else d))
    fx = {}
    def at(g, *ops): fx.setdefault(g, []).extend(ops)
    tags = [f"V{p}_{i}"] + ([f"K{p}_{i+1}"] if i < 15 else [])
    at(-1, Wait(vm_tags=tags, lg0=True), I("s_barrier"))
    ks = i & 3
    at(0, m0set(sW4k, KB + ks * SLOT))
    for g, q in zip((1, 2, 3, 4), kgroup(f"K{p}_{i+4}", ks)): at(g, q)
    vs = (i + 3) & 3
    if i <= 12: tag = f"V{p}_{i+3}"
    elif p == 0: tag = f"W1_{i-13}"
    else: tag = f"O_{i-13}"
    at(5, m0set(sW4k, VB + vs * SLOT))
    for g, q in zip((6, 7, 8, 9), dgroup(tag, vs, OPT["kvpol"])): at(g, q)
    vr = []
    for u in range(8):
        for kt in range(2):
            d = aVF + 4 * u + 2 * kt
            vr.append(I(f"ds_read_b64_tr_b16 a[{d}:{d+1}], v{vVr+u} offset:{ks*SLOT + kt*4096}",
                        rtile=f"V{p}_{i}", rslot=[f"V{ks}"]))
    vg = [0, 5] + list(range(11, 36, 2)) + [34]
    for g, q in zip(sorted(vg), vr): at(g, q)
    at(39, Wait(lg_ops=vr))
    kr = kreads(p, i + 1)
    for g, q in zip((54, 57, 63, 66, 72, 75, 76, 77), kr): at(g, q)
    at(79, I(f"s_add_u32 s{sOffK}, s{sOffK}, 8192")); at(80, incD())
    q = []
    for t in range(5):
        b = vS + 8 * t; last = 8 * t + 7
        if first:
            m, m2 = vT, vT + 1
            q += [I(f"v_max3_f32 v{m}, v{b}, v{b+1}, v{b+2}", after=last),
                  I(f"v_max3_f32 v{m}, v{m}, v{b+3}, v{b+4}", after=last),
                  I(f"v_max3_f32 v{m}, v{m}, v{b+5}, v{b+6}", after=last),
                  I(f"v_max_f32 v{m}, v{m}, v{b+7}", after=last),
                  I(f"v_mov_b32 v{m2}, v{m}"), I(f"v_permlane32_swap_b32 v{m2}, v{m}"),
                  I(f"v_max_f32 v{m}, v{m}, v{m2}"),
                  I(f"v_mov_b32 v{m2}, v{m}"), I(f"v_permlane16_swap_b32 v{m2}, v{m}"),
                  I(f"v_max_f32 v{m}, v{m}, v{m2}")]
            q += [I(f"v_sub_f32 v{vNM+4*t+k}, 0, v{m}") for k in range(4)]
            q += [I(f"v_sub_f32 v{b+k}, v{b+k}, v{m}", after=last) for k in range(8)]
        for k in range(8):
            q.append(I(f"v_exp_f32 v{b+k}, v{b+k}", after=(last - 4 if k < 4 and not first else last)))
        for k in range(4):
            q.append(I(f"v_cvt_pk_bf16_f32 v{b+k}, v{b+2*k}, v{b+2*k+1}", after=last))
    for g, x in extra_end: at(g, x)
    ops = weave(ms, fx, reorder(q))
    P.emit(name, ops)
    return ops

def reorder(q): return q

def aphase(p):
    P.emit("APRE", [I(f"s_mov_b32 s{sCnt}, 0")] + stamp_at("A"))
    astep(p, 0, "A0")
    for i in range(1, 16):
        k = (i - 1) & 3
        ex = []
        if k == 2: ex = [(82, I(f"s_cmp_eq_u32 s{sCnt}, 3")), (84, I("s_cbranch_scc1 L_aend"))]
        if k == 3: ex = [(81, I(f"s_add_u32 s{sCnt}, s{sCnt}, 1")), (82, I(f"s_cmp_lt_u32 s{sCnt}, 3")),
                         (84, I("s_cbranch_scc1 L_aloop"))]
        astep(p, i, f"AL{k}", ex)
        if i == 12:
            P.emit("ASWAP", [I(f"s_cmp_eq_u32 s{sPair}, 0"), I("s_cbranch_scc0 L_aswap1")])
            o = setD_W(512) if p == 0 else setD_O()
            if OPT["touch"] & 2:
                if p == 0: touch_w(o, 512, vT + 11); touch_x(o, 0, vT + 11)
                else: touch_o(o, vT + 11)
            if p == 1:
                o += [I(f"v_mov_b32 v{vT+9}, 0"), I(f"global_load_dword v{vT+10}, v{vT+9}, s[{sDbg}:{sDbg+1}] sc1", tag="nonce")]
            P.emit(f"ASWAP{p}", o + [I("s_branch L_aloop")])

stamp_sites = {}
def stamp_at(site):
    return []

def rinv_ops():
    o = [I("s_nop 7")]
    for t in range(5): o.append(I(f"v_accvgpr_read_b32 v{vT+2*t}, a{aL+4*t}"))
    for t in range(5): o.append(I(f"v_rcp_f32 v{vT+2*t}, v{vT+2*t}"))
    return o
def norm_ops(n, dst):
    s, t = divmod(n, 5); b = vACC + 8 * n
    o = [I(f"v_pk_mul_f32 v[{b+2*k}:{b+2*k+1}], v[{b+2*k}:{b+2*k+1}], v[{vT+2*t}:{vT+2*t+1}] op_sel_hi:[1,0]") for k in range(4)]
    o += [I(f"v_cvt_pk_bf16_f32 v{dst+k}, v{b+2*k}, v{b+2*k+1}") for k in range(4)]
    return o

def aend_common():
    P.emit("AEND", [Wait(vm_tags=["Kz"] if False else [], lg0=True), I("s_barrier")] + stamp() + [
                    I(f"s_cmp_eq_u32 s{sPair}, 0"), I("s_cbranch_scc0 L_aepi1")])

def aepi0():
    o = rinv_ops()
    for n in range(20):
        b = vACC + 8 * n
        o += norm_ops(n, b)
        o += [I(f"v_accvgpr_write_b32 a{aOP+4*n+k}, v{b+k}") for k in range(4)]
    o += [I(f"s_add_u32 s{sK}, s{sK}, 0x40000"), I(f"s_addc_u32 s{sK+1}, s{sK+1}, 0"),
          I(f"s_add_u32 s{sVb}, s{sVb}, 0x40000"), I(f"s_addc_u32 s{sVb+1}, s{sVb+1}, 0"),
          I(f"s_mov_b32 s{sPair}, 1")]
    o += stamp()
    o += [Wait(vm_tags=["K0_19"]), I("s_barrier"), I("s_branch L_q")]
    P.emit("AEPI0", o)

XB = KB
def aepi1():
    o = []
    A = lambda s: o.extend(I(x.strip()) for x in s.strip().split("\n") if x.strip())
    o += [m0set(sW4k, VB + 3 * SLOT), I("s_nop 0")] + dgroup("O_3", 3, OPT["wpol"])
    o += [I(f"v_readfirstlane_b32 s{sNonce}, v{vT+10}"), I("s_nop 3"), I(f"s_cmp_eq_u32 s{sNonce}, 0"),
          I("s_cbranch_scc1 L_nspin"), Label("L_ngot")]
    o += rinv_ops()
    w, rdv = vT + 10, vT + 11
    A(f"""
    s_mul_i32 s48, s{sWave}, 20480
    s_add_u32 s48, s48, {XB}
    v_lshl_add_u32 v{w}, v{vL}, 4, s48
    s_xor_b32 s48, s{sWave}, 2
    s_mul_i32 s48, s48, 20480
    s_add_u32 s48, s48, {XB}
    v_lshl_add_u32 v{rdv}, v{vL}, 4, s48
    """)
    o += [Wait(vm_tags=["K1_19"]), I("s_barrier")]
    for n in range(20):
        o.append(I(f"ds_write_b128 v{w}, a[{aOP+4*n}:{aOP+4*n+3}] offset:{1024*n}", tag="E0", wslot=["EX"]))
        o += norm_ops(n, vACC + 4 * n)
    o += [Wait(lg0=True), I("s_barrier")]
    o += [I(f"ds_read_b128 a[{160+4*n}:{160+4*n+3}], v{rdv} offset:{1024*n}", rtile="E0", rslot=["EX"]) for n in range(20)]
    o += [Wait(lg0=True), I("s_barrier")]
    o += [I(f"ds_write_b128 v{w}, v[{vACC+4*n}:{vACC+4*n+3}] offset:{1024*n}", tag="E1", wslot=["EX"]) for n in range(20)]
    g, r, c, x, y = (vT + 6 + k for k in range(3)), None, None, None, None
    g, r, c = vNM, vNM + 1, vNM + 2; x, y = vNM + 3, vNM + 4
    A(f"""
    v_lshrrev_b32 v{g}, 4, v{vL}
    v_bfe_u32 v{r}, v{vL}, 2, 2
    v_and_b32 v{c}, 3, v{vL}
    v_lshl_add_u32 v{y}, v{g}, 2, v{r}
    v_bfe_u32 v{x}, v{y}, 1, 2
    v_lshlrev_b32 v{y}, 7, v{y}
    v_lshl_add_u32 v{y}, v{c}, 3, v{y}
    s_and_b32 s48, s{sWave}, 2
    v_xor_b32 v{x}, s48, v{x}
    v_lshl_add_u32 v{y}, v{x}, 5, v{y}
    s_lshl_b32 s48, s48, 13
    s_sub_u32 s49, {SLOT}, s48
    v_add_u32 v{vOr}, s48, v{y}
    v_add_u32 v{vOr+2}, s49, v{y}
    v_xor_b32 v{vOr+1}, 32, v{vOr}
    v_xor_b32 v{vOr+3}, 32, v{vOr+2}
    v_lshl_add_u32 v{vP}, v{vL}, 4, s{sW5k}
    v_add_u32 v{vP+1}, 4096, v{vP}
    s_mov_b32 s{sOffP}, 0x1000000
    s_mov_b32 s{sOffF}, 0x1000000
    s_mov_b32 s{sCnt}, 0
    v_mov_b32 v{vNon}, s{sNonce}
    s_lshl_b32 s48, s{sWave}, 5
    v_mov_b32 v{x}, 0x1000000
    v_mov_b32 v{y}, s48
    v_cmp_eq_u32 vcc, 0, v{vL}
    s_lshl_b32 s49, s{sHg}, 7
    s_add_u32 s48, s48, s49
    v_cndmask_b32 v{vFp}, v{x}, v{y}, vcc
    v_lshl_add_u32 v{y}, v{vL}, 2, s48
    v_cmp_gt_u32 vcc, 8, v{vL}
    v_bfe_u32 v{r}, v{vL}, 2, 2
    v_and_b32 v{c}, 1, v{vL}
    v_cndmask_b32 v{vFc}, v{x}, v{y}, vcc
    v_lshlrev_b32 v{c}, 4, v{c}
    v_mov_b32 v{x}, 0x3f80
    v_lshlrev_b32 v{x}, v{c}, v{x}
    v_cmp_eq_u32 vcc, v{r}, v{g}
    v_and_b32 v{c}, 2, v{vL}
    v_mov_b32 v{r}, 0
    v_cndmask_b32 v{x}, v{r}, v{x}, vcc
    v_cmp_eq_u32 vcc, 0, v{c}
    v_accvgpr_write_b32 a{aID}, v{r}
    v_accvgpr_write_b32 a{aID+1}, v{r}
    v_cndmask_b32 v{y}, v{r}, v{x}, vcc
    v_cndmask_b32 v{c}, v{x}, v{r}, vcc
    v_accvgpr_write_b32 a{aID+4}, v{r}
    v_accvgpr_write_b32 a{aID+5}, v{r}
    v_accvgpr_write_b32 a{aID+2}, v{y}
    v_accvgpr_write_b32 a{aID+3}, v{c}
    """)
    o += [Wait(vm_tags=["O_0", "O_1"], lg0=True), I("s_barrier")]
    o += [I(f"ds_read_b128 a[{4*n}:{4*n+3}], v{rdv} offset:{1024*n}", rtile="E1", rslot=["EX"]) for n in range(20)]
    fr = []
    for f in range(8): fr += oreads(0, f)
    o += fr
    ostate["first"] = fr; ostate["late"] = None
    o += stamp()
    P.emit("AEPI1", o)

ostate = {}
def ofr(f, par): return vS + 4 * (f + 2) if (f >= 6 and par) else vS + 4 * f
def oreads(t, f):
    z = t & 3; s, nt = f >> 1, f & 1; d = ofr(f, t & 1)
    va = vOr + 2 * (z & 1) + nt; base = (z & 2) * SLOT
    y2 = t & ~1
    tags = [f"O_{y2}", f"O_{y2+1}"] if t < 32 else None
    return [I(f"ds_read_b64_tr_b16 v[{d+2*k}:{d+2*k+1}], v{va} offset:{base + s*4096 + k*2048}",
              rtile=tags, rslot=[f"V{z&2}", f"V{(z&2)+1}"]) for k in range(2)]
def bfrag(z, s, t):
    n = s * 5 + t
    return [rt("a", aOP + 4 * n, 4), rt("a", 160 + 4 * n, 4), rt("v", vACC + 4 * n, 4), rt("a", 4 * n, 4)][z]
def oepi_ops(par, k):
    cv = []; st = []
    for t in range(5):
        b = vOACC + 40 * par + 8 * t
        cv.append([I(f"v_cvt_pk_bf16_f32 v{vNM+4*t+j}, v{b+2*j}, v{b+2*j+1}") for j in range(4)])
        va, imm = (vP, 1024 * t) if t < 4 else (vP + 1, 0)
        im = f" offset:{imm}" if imm else ""
        st.append(I(f"buffer_store_dwordx4 v[{vNM+4*t}:{vNM+4*t+3}], v{va}, s[{sP}:{sP+3}], s{sOffP} offen{im}{pol(OPT['ppol'])}", tag=f"pst{k}"))
    return cv, st
def flag_store(): return I(f"buffer_store_dword v{vNon}, v{vFp}, s[{sF}:{sF+3}], s{sOffF} offen sc1", tag="flag")
def poll(tag): return I(f"buffer_load_dword v{vPoll}, v{vFc}, s[{sF}:{sF+3}], 0 offen sc1", tag=tag)
def check(mask, spin, back):
    return [I(f"v_cmp_eq_u32 vcc, v{vPoll}, v{vNon}"), I("s_nop 3"), I(f"s_and_b32 s48, vcc_lo, {mask}"),
            I(f"s_cmp_eq_u32 s48, {mask}"), I(f"s_cbranch_scc0 {spin}"), Label(back)]
def pdst(k): return 80 + 20 * k
def ploads(k):
    o = []
    for t in range(5):
        va, imm = (vP, 1024 * t) if t < 4 else (vP + 1, 0)
        im = f" offset:{imm}" if imm else ""
        d = pdst(k) + 4 * t
        o.append(I(f"buffer_load_dwordx4 a[{d}:{d+3}], v{va}, s[{sP}:{sP+3}], s{42+(k&1)} offen{im} sc1", tag=f"pin{k}"))
    return o
def pbase(k):
    if k == 0: return I(f"s_mul_i32 s42, s{sHg}, 143360")
    return I(f"s_add_u32 s{42+(k&1)}, s{42+((k-1)&1)}, 20480")
def pmfma(k):
    ms = []
    for t in range(5):
        for nt in range(2):
            d = rt("v", vOACC + 40 + 8 * t + 4 * nt, 4)
            ms.append(mf(d, rt("a", aID + 2 - 2 * nt, 4), rt("a", pdst(k) + 4 * t, 4), d))
    return ms

def ostage(t, name, extra_end=()):
    z = t & 3; ch = t >> 2; par = ch & 1; last = ch == 7
    ms = []
    for s in range(4):
        for nt in range(2):
            for q in range(5):
                d = rt("v", vOACC + 40 * par + 8 * q + 4 * nt, 4)
                ms.append(mf(d, rt("v", ofr(2 * s + nt, t & 1), 4), bfrag(z, s, q), "0" if (z == 0 and s == 0) else d))
    fx = {}
    def at(g, *ops): fx.setdefault(g, []).extend(ops)
    if t == 31: at(-1, Wait(lg0=True))
    elif t == 30:
        at(-1, Wait(vm_tags=["pst6", "poll1"], lg0=True), flag_store(), *check(0x1f, "L_spin1", "L_got1"))
    elif t & 1:
        tags = [f"O_{t+1}", f"O_{t+2}"] + ([f"pst{ch-1}"] if z == 3 else [])
        at(-1, Wait(vm_tags=tags, lg0=True), I("s_barrier"))
    else:
        at(-1, Wait(lg0=True))
    if t < 31:
        for f in range(8):
            w = oreads(t + 1, f)
            g0 = {6: 27, 7: 6}.get(f, 5 * f + 4)
            at(g0, w[0]); at(g0 + 1, w[1])
    qv = []
    if (t & 1) and not last:
        for k, gs in ((0, (0, 1, 2, 3, 8)), (1, (11, 12, 13, 16, 17))):
            tt = t + 3 + k; sl = tt & 3
            at(gs[0], m0set(sW4k, VB + sl * SLOT), I(f"s_add_u32 s{sOffD}, s{sChunk}, {(tt&3)*0x20000}"))
            for g, q in zip(gs[1:], dgroup(f"O_{tt}", sl, OPT["wpol"])): at(g, q)
    if z == 0:
        cv, st = oepi_ops(par ^ 1, ch - 1)
        for q in range(5):
            for x in cv[q]: x.meta["after"] = 3
            qv += cv[q]
        if not last:
            at(32, I(f"s_add_u32 s{sChunk}, s{sChunk}, 128"), I(f"s_and_b32 s{sChunk}, s{sChunk}, 0x3ff"))
            for g, x in zip((18, 21, 23, 26, 31), st): at(g, x)
            at(37, I(f"s_mov_b32 s{sOffP}, s{sCurP}"))
        else:
            at(0, poll("poll1"))
            for g, x in zip((11, 13, 17, 21, 23), st): at(g, x)
    if z == 3 and not last:
        at(18, flag_store())
        at(21, I(f"s_mov_b32 s{sOffF}, s{sCurF}"), I(f"s_add_u32 s{sCurF}, s{sCurF}, 132"), I(f"s_add_u32 s{sCurP}, s{sCurP}, 163840"))
        at(22, I(f"s_cmp_ge_u32 s{sCurF}, 1024"), I("s_cselect_b32 s48, 1024, 0"), I("s_cselect_b32 s49, 1146880, 0"))
        at(23, I(f"s_sub_u32 s{sCurF}, s{sCurF}, s48"), I(f"s_sub_u32 s{sCurP}, s{sCurP}, s49"))
    if t >= 30:
        free = [g for g in range(40) if g not in fx]
        ks = (0, 1, 2) if t == 30 else (3, 4)
        for k in ks:
            at(free.pop(0), pbase(k))
            for x in ploads(k): at(free.pop(0), x)
    for g, x in extra_end: at(g, x)
    ops = weave(ms, fx, qv)
    P.emit(name, ops)
    return ops

def spin_block(name, back, mask, dst_ok=True):
    return [Label(name), I("s_mov_b32 s49, 0"), Label(name + "_l"),
            I(f"buffer_load_dword v{vPoll}, v{vFc}, s[{sF}:{sF+3}], 0 offen sc1"), I("s_waitcnt vmcnt(0)"),
            I(f"v_cmp_eq_u32 vcc, v{vPoll}, v{vNon}"), I("s_nop 3"), I(f"s_and_b32 s48, vcc_lo, {mask}"),
            I(f"s_cmp_eq_u32 s48, {mask}"), I(f"s_cbranch_scc1 {back}"),
            I("s_add_u32 s49, s49, 1"), I("s_cmp_lt_u32 s49, 0x40000"), I(f"s_cbranch_scc1 {name}_l"), I(f"s_branch {back}")]

def outofline():
    o = spin_block("L_spin1", "L_got1", 0x1f) + spin_block("L_spin2", "L_got2", 0x60)
    o += [Label("L_nspin"), I("s_mov_b32 s49, 0"), Label("L_nspin_l"), I(f"v_mov_b32 v{vT+9}, 0"),
          I(f"global_load_dword v{vT+10}, v{vT+9}, s[{sDbg}:{sDbg+1}] sc1"), I("s_waitcnt vmcnt(0)"),
          I(f"v_readfirstlane_b32 s{sNonce}, v{vT+10}"), I("s_nop 3"), I(f"s_cmp_eq_u32 s{sNonce}, 0"), I("s_cbranch_scc0 L_ngot"),
          I("s_add_u32 s49, s49, 1"), I("s_cmp_lt_u32 s49, 0x40000"), I("s_cbranch_scc1 L_nspin_l"), I("s_branch L_ngot")]
    o += [Label("L_pick"), I("s_mov_b32 s48, 0"), Label("L_pick_l"), I("s_add_u32 s48, s48, 1")]
    for k in range(4):
        o += [I(f"v_cmp_eq_u32 vcc, s48, v{vS+k}"), I("s_nop 3"), I("s_cbranch_vccnz L_pick_l")]
    o += [I(f"v_mov_b32 v{vS}, s48"), I(f"v_mov_b32 v{vS+1}, 0"), I("s_mov_b64 exec, 1"),
          I(f"global_store_dword v{vS+1}, v{vS}, s[{sDbg}:{sDbg+1}] sc1"), I("s_mov_b64 exec, -1"), I("s_nop 1"), I("s_branch L_picked")]
    return "\n".join(x.text if x.kind == "l" else "  " + x.text for x in o)

def ophase():
    P.emit("ODUMMY", [])
    for t in range(28):
        ex = []
        if (t & 7) == 3: ex = [(36, I(f"s_cmp_eq_u32 s{sCnt}, 3")), (39, I("s_cbranch_scc1 L_olast"))]
        if (t & 7) == 7: ex = [(36, I(f"s_add_u32 s{sCnt}, s{sCnt}, 1")), (39, I("s_branch L_oloop"))]
        ostage(t, f"OL{t&7}", ex)
    for t in range(28, 32): ostage(t, f"O{t}")
    o = stamp()
    A = lambda s: o.extend(I(x.strip()) for x in s.strip().split("\n") if x.strip())
    o += [poll("poll2")]
    A(f"s_load_dwordx2 s[44:45], s[0:1], 80")
    ms = []
    fx = {-1: [Wait(vm_tags=["pin0"])]}
    for k in range(5):
        ms += pmfma(k)
        if k < 4: fx[10 * k + 9] = [Wait(vm_tags=[f"pin{k+1}"])]
    adr = [I(x.strip()) for x in f"""
    s_lshr_b32 s46, s2, 4
    s_mul_i32 s46, s46, 160
    s_and_b32 s47, s{sWave}, 1
    s_mul_i32 s47, s47, 80
    s_add_u32 s46, s46, s47
    s_lshl_b32 s46, s46, 11
    s_bfe_u32 s47, s2, 0x10002
    s_lshl_b32 s47, s47, 10
    s_add_u32 s46, s46, s47
    s_lshl_b32 s47, s{sHg}, 7
    s_add_u32 s46, s46, s47
    s_lshr_b32 s47, s{sWave}, 1
    s_lshl_b32 s47, s47, 6
    s_add_u32 s{sOffD}, s46, s47
    v_and_b32 v{vOut}, 15, v{vL}
    v_lshlrev_b32 v{vOut}, 11, v{vOut}
    v_lshrrev_b32 v{vOut+1}, 5, v{vL}
    v_lshl_add_u32 v{vOut}, v{vOut+1}, 4, v{vOut}
    v_bfe_u32 v{vOut+1}, v{vL}, 4, 1
    v_lshl_add_u32 v{vOut}, v{vOut+1}, 5, v{vOut}
    """.strip().split("\n")]
    g = 0
    for x in adr:
        while g in fx: g += 1
        fx[g] = [x]; g += 1
    o += weave(ms, fx)
    o += [Wait(vm_tags=["poll2"], lg0=True)] + check(0x60, "L_spin2", "L_got2")
    for k in (5, 6): o += [pbase(k)] + ploads(k)
    A("s_mov_b32 s46, 5242880\ns_mov_b32 s47, 0x20000")
    o += weave(pmfma(5) + pmfma(6), {-1: [Wait(vm_tags=["pin5"])], 9: [Wait(vm_tags=["pin6"])]})
    o += [I("s_nop 7")]
    for t in range(5):
        b = vOACC + 40 + 8 * t; d = vNM + 4 * t
        o += [I(f"v_cvt_pk_bf16_f32 v{d+j}, v{b+2*j}, v{b+2*j+1}") for j in range(4)]
        o += [I("s_nop 1"), I(f"v_permlane16_swap_b32 v{d}, v{d+2}"), I(f"v_permlane16_swap_b32 v{d+1}, v{d+3}"),
              I(f"buffer_store_dwordx4 v[{d}:{d+3}], v{vOut}, s[44:47], s{sOffD} offen"),
              I(f"s_add_u32 s{sOffD}, s{sOffD}, 32768")]
    o += [I("s_waitcnt vmcnt(0)")] + stamp() + stamp(True)
    if OPT["stamps"]:
        n = nstamp[0]
        o += [I("s_load_dwordx2 s[44:45], s[0:1], 96"), I("s_waitcnt lgkmcnt(0)"),
              I("s_add_u32 s44, s44, 0x4000000"), I("s_addc_u32 s45, s45, 0"),
              I(f"s_mul_i32 s46, s2, {8*n}"), I(f"v_mov_b32 v{vT+2}, s46"), I(f"s_cmp_eq_u32 s{sWave}, 0"), I("s_cbranch_scc0 L_nost")]
        for k in range(n):
            o += [I(f"v_mov_b32 v{vT}, s{sST+2*k}"), I(f"v_mov_b32 v{vT+1}, s{sST+2*k+1}"),
                  I(f"global_store_dwordx2 v{vT+2}, v[{vT}:{vT+1}], s[44:45] offset:{8*k}"), I("s_nop 1")]
        o += [Label("L_nost")]
    o += [I("s_waitcnt vmcnt(0) lgkmcnt(0)")]
    P.emit("FIN", o)

def reduce_kernel():
    L = []
    A = lambda s: L.extend("  " + x.strip() for x in s.strip().split("\n") if x.strip())
    A(f"""
    s_cmp_ge_u32 s2, 1280
    s_cbranch_scc1 L_rend
    s_load_dwordx2 s[4:5], s[0:1], 96
    s_load_dwordx2 s[8:9], s[0:1], 80
    v_lshrrev_b32 v1, 6, v0
    v_and_b32 v0, 63, v0
    v_readfirstlane_b32 s3, v1
    s_lshl_b32 s12, s2, 2
    s_add_u32 s12, s12, s3
    s_mul_hi_u32 s13, s12, 26843546
    s_mul_i32 s14, s13, 160
    s_sub_u32 s14, s12, s14
    s_mul_i32 s15, s13, 1310720
    s_lshl_b32 s16, s14, 10
    s_add_u32 s15, s15, s16
    v_lshl_add_u32 v2, v0, 4, s15
    s_waitcnt lgkmcnt(0)
    s_mov_b32 s6, 41943040
    s_mov_b32 s7, 0x20000
    s_mov_b32 s10, 5242880
    s_mov_b32 s11, 0x20000
    """)
    for k in range(8):
        A(f"s_mov_b32 s20, {163840*k}\nbuffer_load_dwordx4 v[{8+4*k}:{11+4*k}], v2, s[4:7], s20 offen{pol(OPT.get('rpol',''))}")
    A(f"""
    s_mul_hi_u32 s16, s14, 214748365
    s_mul_i32 s17, s16, 20
    s_sub_u32 s17, s14, s17
    s_mul_hi_u32 s18, s17, 858993460
    s_mul_i32 s19, s18, 5
    s_sub_u32 s19, s17, s19
    s_and_b32 s21, s13, 15
    s_mul_i32 s21, s21, 160
    s_and_b32 s22, s18, 1
    s_mul_i32 s22, s22, 80
    s_add_u32 s21, s21, s22
    s_lshl_b32 s22, s19, 4
    s_add_u32 s21, s21, s22
    s_lshl_b32 s21, s21, 11
    s_lshr_b32 s22, s13, 4
    s_lshl_b32 s22, s22, 10
    s_add_u32 s21, s21, s22
    s_lshl_b32 s22, s16, 7
    s_add_u32 s21, s21, s22
    s_lshr_b32 s22, s18, 1
    s_lshl_b32 s22, s22, 6
    s_add_u32 s21, s21, s22
    v_and_b32 v3, 15, v0
    v_lshlrev_b32 v3, 11, v3
    v_lshrrev_b32 v4, 5, v0
    v_lshl_add_u32 v3, v4, 4, v3
    v_bfe_u32 v4, v0, 4, 1
    v_lshl_add_u32 v3, v4, 5, v3
    s_mov_b32 s23, 0xffff0000
    """)
    for k in range(8):
        A(f"s_waitcnt vmcnt({7-k})")
        for j in range(4):
            src = 8 + 4 * k + j
            if k == 0:
                A(f"v_lshlrev_b32 v{40+2*j}, 16, v{src}\nv_and_b32 v{41+2*j}, s23, v{src}")
            else:
                A(f"v_lshlrev_b32 v5, 16, v{src}\nv_and_b32 v6, s23, v{src}\nv_add_f32 v{40+2*j}, v{40+2*j}, v5\nv_add_f32 v{41+2*j}, v{41+2*j}, v6")
    for j in range(4): A(f"v_cvt_pk_bf16_f32 v{48+j}, v{40+2*j}, v{41+2*j}")
    A("""
    s_nop 1
    v_permlane16_swap_b32 v48, v50
    v_permlane16_swap_b32 v49, v51
    v_mov_b32 v52, v48
    v_mov_b32 v53, v49
    v_mov_b32 v54, v50
    v_mov_b32 v55, v51
    buffer_store_dwordx4 v[52:55], v3, s[8:11], s21 offen
    s_waitcnt vmcnt(0)
    """)
    L.append("L_rend:\n  s_endpgm")
    return "\n".join(L) + "\n"

def dump_regs(f, start, n, name):
    o = [I("s_nop 7"), I("s_waitcnt vmcnt(0) lgkmcnt(0)"), I("s_load_dwordx2 s[44:45], s[0:1], 96"), I("s_waitcnt lgkmcnt(0)"),
         I(f"s_lshl_b32 s46, s2, 2"), I(f"s_add_u32 s46, s46, s{sWave}"), I(f"s_mul_i32 s46, s46, {n*256}"),
         I(f"v_lshl_add_u32 v{vT}, v{vL}, 4, s46")]
    for k in range(n // 4):
        o += [I(f"global_store_dwordx4 v{vT}, {rt(f, start+4*k, 4)}, s[44:45]"), I(f"v_add_u32 v{vT}, 1024, v{vT}")]
    o += [I("s_waitcnt vmcnt(0)"), I("s_endpgm")]
    P.emit(name, o)

def build():
    prologue(); qpre(0); touches()
    lay = ["PRO", "QPRE0:", "QPRE"]
    P.emit("QGATE", [I(f"s_cmp_eq_u32 s{sPair}, 0"), I("s_cbranch_scc0 L_qfirst")])
    tr = P.trace; tr[-1], tr[-2] = tr[-2], tr[-1]
    qphase(0)
    d = OPT["dump"]
    if d == "q0": dump_regs("a", aQ, 80, "DUMP")
    else:
        aphase(0); aend_common();
        if d == "o0":
            aepi0(); P.trace[-1][1].pop(); dump_regs("a", aOP, 80, "DUMP")
        else:
            aepi0(); qpre(1)
            P.emit("QGATE", [I(f"s_cmp_eq_u32 s{sPair}, 0"), I("s_cbranch_scc0 L_qfirst")])
            qphase(1); aphase(1); aend_common(); aepi1(); ophase()
    order = ["PRO", "L_q:", "QPRE", "QGATE", "TOUCH", "L_qfirst:", "QFIRST", "Q0", "L_qloop:", "QL0", "QL1", "QL2", "QL3",
             "QSWAP", "Q13", "Q14", "Q15", "QEPI"]
    if d == "q0":
        order += ["DUMP"]
    else:
        order += ["APRE", "A0", "L_aloop:", "AL0", "AL1", "AL2", "AL3", "ASWAP", "ASWAP0", "L_aswap1:"]
        if d == "o0": order += ["  s_endpgm", "L_aend:", "AEND", "AEPI0", "DUMP", "L_aepi1:"]
        else: order += ["ASWAP1", "L_aend:", "AEND", "AEPI0", "L_aepi1:", "AEPI1", "ODUMMY", "L_oloop:"] + [f"OL{k}" for k in range(8)] + ["L_olast:", "O28", "O29", "O30", "O31", "FIN"]
    order += ["L_end:", "  s_endpgm"]
    if not d: order += [outofline()]
    else: order += ["L_pick:", "  s_branch L_picked"]
    P.layout = order
    P.resolve_waits()
    errs = P.verify()
    for e in errs[:40]: print("VERIFY:", e, file=sys.stderr)
    tot = 0
    seen = {}
    for n, ops in P.trace:
        c = estimate(ops); tot += c; seen.setdefault(n, [0, c, len(ops)])[0] += 1
    print("est cycles:", tot, {k: v for k, v in seen.items()}, file=sys.stderr)
    assert not errs
    ref = open(os.path.join(os.path.dirname(os.path.abspath(__file__)), "..", "cdna_kernels", KN[:-7] + ".s.ref")).read()
    hdr = [l for l in ref.split("\n") if l.startswith(";") and "@launch" not in l and "Override" not in l and "grid=ceil" not in l]
    out = "\n".join(hdr) + "\n"
    two = False
    out += f"; @launch grid=(256,1,1) block=(256,1,1) lds=163840\n"
    if two: out += f"; @launch kernel={RN} grid=(1280,1,1) block=(256,1,1) lds=0\n"
    out += '.amdgcn_target "amdgcn-amd-amdhsa--gfx950"\n.text\n'
    out += f".globl {KN}\n.p2align 8\n.type {KN},@function\n{KN}:\n" + P.text()
    if two: out += f".globl {RN}\n.p2align 8\n.type {RN},@function\n{RN}:\n" + reduce_kernel()
    out += '.section .rodata,"a"\n'
    def kd(n, v, a, s):
        return (f".p2align 6\n.amdhsa_kernel {n}\n  .amdhsa_next_free_vgpr {v}\n  .amdhsa_next_free_sgpr {s}\n"
                f"  .amdhsa_accum_offset {a}\n  .amdhsa_group_segment_fixed_size 0\n  .amdhsa_kernarg_size 104\n"
                "  .amdhsa_user_sgpr_count 2\n  .amdhsa_user_sgpr_kernarg_segment_ptr 1\n"
                "  .amdhsa_system_sgpr_workgroup_id_x 1\n.end_amdhsa_kernel\n")
    out += kd(KN, 512, 256, 102)
    if two: out += kd(RN, 56, 56, 32)
    sys.stdout.write(out)

build()
```
